```python
import torch

def _softmax(x, axis=-1):
    return torch.softmax(x, dim=axis)
def _gelu(x):
    return torch.nn.functional.gelu(x, approximate="tanh")
def _silu(x):
    return torch.nn.functional.silu(x)
def _sigmoid(x):
    return torch.sigmoid(x)
def _layernorm(x, axis=-1, eps=1e-5):
    m = x.mean(dim=axis, keepdim=True)
    v = x.var(dim=axis, keepdim=True, unbiased=False)
    return (x - m) / torch.sqrt(v + eps)
def _scatter_add(tgt, idx, src, axis=0):
    return tgt.clone().index_add_(axis, idx, src)
def _segment_sum(src, seg, n):
    out = torch.zeros((n,) + src.shape[1:], dtype=src.dtype)
    return out.index_add_(0, seg, src)
def _pad(x, pw):
    flat = tuple(v for pair in reversed(pw) for v in pair)
    return torch.nn.functional.pad(x, flat)

kernel_name = 'interleave_layers__ssm_conv_s4__mixer_token_mlp__prompt'

def setup_inputs():

    _w = (lambda a: (lambda t: t.to(torch.bfloat16) if t.is_floating_point() else t)(torch.as_tensor(a)))
    def _A_setup():
        B, L, D, N = 1, 2048, 448, 256
        A_re = -(lambda _x: torch.exp(torch.as_tensor(_x)))((lambda *s: torch.randn(*s, dtype=torch.bfloat16) * 3.2)(D, N))
        A_im = torch.pi * (lambda *s: torch.randn(*s, dtype=torch.bfloat16) * 0.05)(D, N)
        B_re = (lambda *s: torch.randn(*s, dtype=torch.bfloat16) * 0.05)(D, N)
        B_im = (lambda *s: torch.randn(*s, dtype=torch.bfloat16) * 0.05)(D, N)
        C_re = (lambda *s: torch.randn(*s, dtype=torch.bfloat16) * 0.05)(D, N)
        C_im = (lambda *s: torch.randn(*s, dtype=torch.bfloat16) * 0.05)(D, N)
        log_dt = (lambda *s: torch.randn(*s, dtype=torch.bfloat16) * 0.05)(D) * 0.5 - 4.0
        Dskip = (lambda *s: torch.randn(*s, dtype=torch.bfloat16) * 0.05)(D)
        return {
            "u": _w((lambda *s: torch.randn(*s, dtype=torch.bfloat16) * 0.05)(B, L, D)),
            "A_re": _w(A_re),
            "A_im": _w(A_im),
            "B_re": _w(B_re),
            "B_im": _w(B_im),
            "C_re": _w(C_re),
            "C_im": _w(C_im),
            "log_dt": _w(log_dt),
            "Dskip": _w(Dskip),
        }
    _A_in = _A_setup()

    def _B_setup():
        B, S, D, F = 1, 2048, 448, 1792
        return {
            "x": _w((lambda *s: torch.randn(*s, dtype=torch.bfloat16) * 0.05)(B, S, D)),
            "w1": _w((lambda *s: torch.randn(*s, dtype=torch.bfloat16) * 0.4)(S, F) * (S ** -0.5)),
            "b1": _w((lambda *s: torch.randn(*s, dtype=torch.bfloat16) * 0.2)(F) * 0.02),
            "w2": _w((lambda *s: torch.randn(*s, dtype=torch.bfloat16) * 0.2)(F, S) * (F ** -0.5)),
            "b2": _w((lambda *s: torch.randn(*s, dtype=torch.bfloat16) * 0.2)(S) * 0.02),
        }
    _B_in = _B_setup()

    return {
        "A_u": _A_in["u"],
        "A_A_re": _A_in["A_re"],
        "A_A_im": _A_in["A_im"],
        "A_B_re": _A_in["B_re"],
        "A_B_im": _A_in["B_im"],
        "A_C_re": _A_in["C_re"],
        "A_C_im": _A_in["C_im"],
        "A_log_dt": _A_in["log_dt"],
        "A_Dskip": _A_in["Dskip"],
        "B_x": _B_in["x"],
        "B_w1": _B_in["w1"],
        "B_b1": _B_in["b1"],
        "B_w2": _B_in["w2"],
        "B_b2": _B_in["b2"],
    }

def reference(A_u, A_A_re, A_A_im, A_B_re, A_B_im, A_C_re, A_C_im, A_log_dt, A_Dskip, B_x, B_w1, B_b1, B_w2, B_b2):
    def _A_ref(u, A_re, A_im, B_re, B_im, C_re, C_im, log_dt, Dskip):
        Bsz, L, D = u.shape
        dt = torch.exp(log_dt)[:, None]
        A = A_re + 1j * A_im
        Bc = B_re + 1j * B_im
        Cc = C_re + 1j * C_im
        logdA = dt * A
        dB = dt * Bc
        l = (lambda x, dt: x.to(dt))(torch.arange(L), A_re.dtype)
        P = torch.exp(logdA[:, :, None] * l[None, None, :])
        K = torch.einsum("dn,dnl,dn->dl", Cc, P, dB).real
        L2 = 2 * L
        Kp = _pad(K, ((0, 0), (0, L)))
        up = (lambda x, *d: x.permute(*d))(u, 0, 2, 1)
        up = _pad(up, ((0, 0), (0, 0), (0, L)))
        Kf = (lambda x, axes=(-2,-1): torch.fft.rfft2(x.float(), dim=axes))(Kp[:, None, :], axes=(-2, -1))
        Uf = (lambda x, axes=(-2,-1): torch.fft.rfft2(x.float(), dim=axes))(up[:, :, None, :], axes=(-2, -1))
        Yf = Uf * Kf[None, :, :, :]
        y = (lambda x, s, axes=(-2,-1): torch.fft.irfft2(x, s=s, dim=axes).to(torch.bfloat16))(Yf, (1, L2), axes=(-2, -1))[:, :, 0, :L]
        y = (lambda x, *d: x.permute(*d))(y, 0, 2, 1) + u * Dskip[None, None, :]
        return y

    def _B_ref(x, w1, b1, w2, b2):
        B, S, D = x.shape
        h = _layernorm(x, axis=-1)
        u = torch.einsum("bsd,sf->bdf", h, w1) + b1
        u = _gelu(u)
        y = torch.einsum("bdf,fs->bds", u, w2) + b2
        return (lambda x, *d: x.permute(*d))(y, 0, 2, 1)

    x = A_u
    x = x + _A_ref(_layernorm(x, axis=-1), A_A_re, A_A_im, A_B_re, A_B_im, A_C_re, A_C_im, A_log_dt, A_Dskip)
    x = x + _B_ref(_layernorm(x, axis=-1), B_w1, B_b1, B_w2, B_b2)
    x = x + _A_ref(_layernorm(x, axis=-1), A_A_re, A_A_im, A_B_re, A_B_im, A_C_re, A_C_im, A_log_dt, A_Dskip)
    x = x + _B_ref(_layernorm(x, axis=-1), B_w1, B_b1, B_w2, B_b2)
    return x
```

```python
import re

TRANS = ("v_exp_f32", "v_log_f32", "v_rcp_f32", "v_rsq_f32", "v_sqrt_f32", "v_sin_f32", "v_cos_f32")
NODST_S = ("s_cmp", "s_waitcnt", "s_barrier", "s_cbranch", "s_branch", "s_nop", "s_sleep", "s_setprio",
           "s_endpgm", "s_bitcmp", "s_setpc")

def split_ops(s):
    out, depth, cur = [], 0, ""
    for ch in s:
        if ch in "[(": depth += 1
        if ch in "])": depth -= 1
        if ch == "," and depth == 0:
            out.append(cur.strip()); cur = ""
        else:
            cur += ch
    if cur.strip(): out.append(cur.strip())
    return out

REG = re.compile(r"^-?\|?(?:abs\()?([vas])(?:(\d+)|\[(\d+):(\d+)\])")
def regs(tok):
    tok = tok.strip()
    t0 = tok.split()[0] if tok else ""
    if t0 in ("vcc", "exec"): return {(t0, 0), (t0, 1)}
    if t0 in ("vcc_lo", "exec_lo"): return {(t0[:-3], 0)}
    if t0 in ("vcc_hi", "exec_hi"): return {(t0[:-3], 1)}
    if t0 == "m0": return {("m0", 0)}
    m = REG.match(t0)
    if not m: return set()
    f = m.group(1)
    if m.group(2) is not None: return {(f, int(m.group(2)))}
    return {(f, i) for i in range(int(m.group(3)), int(m.group(4)) + 1)}

class Ins:
    def __init__(self, text):
        self.text = text
        t = text.split(";")[0].strip()
        self.label = None; self.op = ""; self.ops = []
        self.w = set(); self.r = set()
        if t.endswith(":"):
            self.label = t[:-1]; return
        if not t or t.startswith("."):
            return
        p = t.split(None, 1)
        self.op = p[0]; rest = p[1] if len(p) > 1 else ""
        self.ops = split_ops(rest)
        op, o = self.op, self.ops
        R = [regs(x) for x in o]
        allr = set().union(*R) if R else set()
        self.mfma = op.startswith("v_mfma")
        self.valu = op.startswith("v_") and not self.mfma
        self.trans = any(op.startswith(x) for x in TRANS)
        self.vmem = op.startswith(("buffer_", "global_"))
        self.ds = op.startswith("ds_")
        self.salu = op.startswith("s_")
        self.dpp = "_dpp" in op or "quad_perm" in t or "row_sh" in t or "row_newbcast" in t or "row_ror" in t
        self.lds_dma = self.vmem and (re.search(r"\blds\b", t) is not None or "load_lds" in op)
        if self.mfma:
            self.w = R[0]; self.r = R[1] | R[2] | R[3]; self.srcab = R[1] | R[2]; self.srcc = R[3]
            self.passes = 8 if "32x32x16" in op else 4
        elif self.valu:
            if "permlane" in op and "swap" in op:
                self.w = R[0] | R[1]; self.r = R[0] | R[1]
            elif op.startswith(("v_add_co", "v_sub_co", "v_addc_co")):
                self.w = R[0] | R[1]; self.r = set().union(*R[2:])
            else:
                self.w = R[0]; self.r = set().union(*R[1:]) if len(R) > 1 else set()
                if op.startswith(("v_fmac", "v_pk_fmac", "v_writelane", "v_dot2c")) or self.dpp: self.r |= R[0]
                if op.startswith("v_cndmask") and len(o) == 3: self.r |= regs("vcc")
            if op.startswith("v_cmpx"): self.w |= regs("exec")
        elif self.vmem:
            if self.lds_dma: self.r = allr | {("m0", 0)}
            elif "_load" in op: self.w = R[0]; self.r = set().union(*R[1:])
            elif "atomic" in op and re.search(r"\bsc0\b", t): self.w = R[0]; self.r = allr
            else: self.r = allr
            self.wide_store = ("store_dwordx3" in op or "store_dwordx4" in op)
            if self.wide_store:
                self.data = R[0] if op.startswith("buffer") else R[1]
        elif self.ds:
            if op.startswith(("ds_read", "ds_bpermute", "ds_permute", "ds_swizzle")): self.w = R[0]; self.r = set().union(*R[1:])
            else: self.r = allr
        elif self.salu:
            if op.startswith(NODST_S): self.r = allr
            else:
                self.w = R[0]; self.r = set().union(*R[1:]) if len(R) > 1 else set()
                if "saveexec" in op: self.w |= regs("exec")
    def states(self):
        if self.label is not None or not self.op: return 0
        if self.op == "s_nop": return int(self.ops[0], 0) + 1
        return 1

def vg(s): return {x for x in s if x[0] in "va"}
def sg(s): return {x for x in s if x[0] in ("s", "vcc")}

def need(p, c):
    n = 0
    if not p.op or not c.op: return 0
    if p.valu:
        pw = vg(p.w); ps = sg(p.w)
        if c.mfma and pw & c.r: n = max(n, 2)
        if c.valu and c.dpp and pw & c.r: n = max(n, 2)
        if c.valu and "permlane" in c.op and pw & c.r: n = max(n, 2)
        if c.op.startswith(("v_readlane", "v_readfirstlane")) and pw & c.r: n = max(n, 1)
        if p.trans and c.valu and not c.trans and pw & c.r: n = max(n, 1)
        if p.trans and c.valu and c.trans and pw & c.r: n = max(n, 1)
        if ps:
            if c.vmem and ps & c.r: n = max(n, 5)
            if c.valu and ps & c.r: n = max(n, 4 if c.op.startswith(("v_readlane", "v_writelane")) else 2)
            if c.salu and ps & c.r: n = max(n, 1)
        if ("exec", 0) in p.w:
            if c.valu and c.dpp: n = max(n, 5)
            if c.mfma or "permlane" in c.op or c.op.startswith(("v_readlane", "v_readfirstlane")): n = max(n, 4)
        if ("op_sel" in p.text and not p.op.startswith("v_pk")) or "dst_sel" in p.text:
            if c.valu and pw & (c.r | c.w): n = max(n, 1)
    if p.mfma:
        big = p.passes == 8
        if c.mfma:
            if p.w & c.srcab: n = max(n, 12 if big else 8)
            if p.w & c.srcc and not (p.w == c.srcc and p.passes == c.passes): n = max(n, 10 if big else 6)
        elif c.valu or c.vmem or c.ds:
            if p.w & (c.r | c.w): n = max(n, 12 if big else 8)
            if c.valu and p.srcc & c.w: n = max(n, 7 if big else 3)
    if p.vmem and getattr(p, "wide_store", False) and c.valu and p.data & c.w: n = max(n, 2)
    if p.vmem and getattr(p, "wide_store", False) and (c.vmem or c.ds or c.mfma) and p.data & c.w: n = max(n, 1)
    if p.salu and ("m0", 0) in p.w and c.vmem and c.lds_dma: n = max(n, 1)
    return n

def fix_hazards(ins):
    MAXD = 13
    i = 0; added = 0
    while i < len(ins):
        c = ins[i]
        if not c.op or c.op == "s_nop":
            i += 1; continue
        labels = {x.label: k for k, x in enumerate(ins) if x.label} if (i == 0 or added != getattr(fix_hazards, "_a", -1)) else fix_hazards._l
        if i == 0 or added != getattr(fix_hazards, "_a", -1):
            br = {}
            for k, x in enumerate(ins):
                if x.op.startswith(("s_branch", "s_cbranch")): br.setdefault(labels[x.ops[0]], []).append(k)
            fix_hazards._l, fix_hazards._b, fix_hazards._a = labels, br, added
        br = fix_hazards._b
        worst = 0
        stack = [(i, 0)]; seen = set()
        while stack:
            k, d = stack.pop()
            preds = []
            if k > 0 and ins[k-1].op not in ("s_branch", "s_endpgm", "s_setpc_b64"): preds.append(k - 1)
            if ins[k].label is not None: preds += br.get(k, [])
            for p in preds:
                if (p, d) in seen: continue
                seen.add((p, d))
                x = ins[p]
                if x.op:
                    nn = need(x, c)
                    if nn > d: worst = max(worst, nn - d)
                d2 = d + x.states()
                if d2 < MAXD: stack.append((p, d2))
        if worst:
            ins.insert(i, Ins(f"s_nop {worst-1}")); added += 1; i += 1
        i += 1
    return added

class Asm:
    def __init__(self):
        self.ins = []; self.vm = []; self.lg = []; self.uid = 0
    def I(self, text, tag=None):
        for line in text.split("\n"):
            line = line.strip()
            if not line: continue
            x = Ins(line); self.ins.append(x)
            if x.op and x.vmem and self.vm is not None: self.vm.append(tag)
            if x.op and x.ds: self.lg.append(tag)
            if x.op == "s_waitcnt" and "lgkmcnt(0)" in line: self.lg = []
    def C(self, text): self.ins.append(Ins("; " + text))
    def L(self, name): self.ins.append(Ins(name + ":"))
    def new(self, p="L"):
        self.uid += 1; return f"{p}_{self.uid}"
    def vm_reset(self): self.vm = []
    def wait_vm(self, tag, extra=""):
        idx = max(k for k, t in enumerate(self.vm) if t == tag)
        n = len(self.vm) - 1 - idx
        assert n <= 63
        self.I(f"s_waitcnt vmcnt({n}) {extra}".strip())
        self.vm = self.vm[idx+1:]
    def wait_lg(self, tag):
        idx = [k for k, t in enumerate(self.lg) if t == tag]
        if not idx: return
        n = len(self.lg) - 1 - max(idx)
        n2 = min(n, 15)
        self.I(f"s_waitcnt lgkmcnt({n2})")
        self.lg = self.lg[len(self.lg)-n2:] if n2 else []
    def wait_vm0(self, extra=""):
        self.I(f"s_waitcnt vmcnt(0) {extra}".strip()); self.vm = []
    def text(self):
        fix_hazards._a = -1
        n = fix_hazards(self.ins)
        out = []
        for x in self.ins:
            out.append(x.text if (x.label is not None or x.text.startswith((".", ";"))) else "    " + x.text)
        return "\n".join(out) + "\n", n
```

```python
import sys, math, struct
sys.path.insert(0, "gen")
from asmlib import Asm

KNAME = "interleave_layers__ssm_conv_s4__mixer_token_mlp__prompt_kernel"
def fl(x): return "0x%08x" % struct.unpack("<I", struct.pack("<f", x))[0]

WS_EPOCH = 0
WS_FLAGS = 0x10000
WS_REC0, WS_REC1 = 0x100000, 0x110000
WS_XB0 = 0x200000
WS_FILL = 0x400000
WS_X1 = WS_FILL; WS_HF = WS_FILL + 0x1C0000; WS_GF = WS_FILL + 0x380000; WS_XB1 = WS_FILL + 0x508000
LSTRIDE = 0x6C8000
WS_STAMP = 0x2000000
W2L = 0; KC = 98304; KCH = 16480; SCR = 131264
U0 = SCR; NRM = SCR + 4608; KD = SCR + 4864; KDH = 1328; U1 = SCR + 7520; USTR = 7520
XCH = SCR + 8000; BR = SCR + 12288
UVROW = 1056; UVCH = 53 * UVROW
sWS, sW1, sW2, sOUT = "s[4:7]", "s[8:11]", "s[12:15]", "s[52:55]"
pX0, pARE, pAIM, pBRE, pBIM, pCRE, pCIM, pLDT, pDSK = ("s[16:17]", "s[18:19]", "s[20:21]", "s[22:23]", "s[24:25]",
                                                      "s[26:27]", "s[28:29]", "s[30:31]", "s[32:33]")
pB1, pB2 = "s[38:39]", "s[42:43]"
(sWV, sLAY, sNON, sXCD, sIDX, sTB, sD0, sG1, sFT, sDT1, sST, sDT2, sLOFF, sEXP, sXB, sREC, sNEED, sSPIN) = (
    "s50", "s51", "s56", "s57", "s58", "s59", "s60", "s61", "s62", "s63", "s64", "s65", "s66", "s67", "s68", "s69", "s70", "s71")
T = ["s72", "s73", "s74", "s75", "s76", "s77", "s78", "s79"]
sP0, sP1 = "s[80:81]", "s[82:83]"
sDK0, sDK1, sFL, sSTB = "s34", "s35", "s3", "s46"
SPINMAX = 1 << 17

def V(a, n=1): return f"v{a}" if n == 1 else f"v[{a}:{a+n-1}]"
def A(a, n=1): return f"a{a}" if n == 1 else f"a[{a}:{a+n-1}]"

class Gen(Asm):
    def __init__(self, sent=False, stamps=False):
        super().__init__()
        self.sent = sent; self.stamps = stamps
        self.stubs = []

    def stamp(self, i, layered=True):
        if not self.stamps: return
        self.I("s_memrealtime s[100:101]")
        self.I(f"s_add_u32 m0, {sSTB}, {i}" if layered else f"s_mov_b32 m0, {i}")
        self.I("s_waitcnt lgkmcnt(0)\nv_writelane_b32 v3, s100, m0")

    def gbar(self):
        I = self.I
        self.wait_vm0("lgkmcnt(0)")
        I("s_barrier")
        l1, l2, l3 = self.new("Lb"), self.new("Lb"), self.new("Lb")
        I(f"s_cmp_lg_u32 {sWV}, 0\ns_cbranch_scc1 {l1}")
        I(f"s_lshl_b32 {T[0]}, s2, 7\ns_add_u32 {T[0]}, {T[0]}, {sFL}\nv_mov_b32 v4, {sNON}\ns_mov_b64 exec, 1")
        I(f"buffer_store_dword v4, off, {sWS}, {T[0]} sc1\ns_mov_b64 exec, -1")
        self.L(l1)
        I(f"v_lshlrev_b32 v4, 7, v0\ns_mov_b32 {sSPIN}, 0")
        self.L(l2)
        I(f"s_sleep 1\nbuffer_load_dword v5, v4, {sWS}, {sFL} offen sc1\ns_waitcnt vmcnt(0)")
        I(f"v_cmp_ne_u32 vcc, {sNON}, v5\ns_add_u32 {sSPIN}, {sSPIN}, 1\ns_cmp_gt_u32 {sSPIN}, {SPINMAX}\ns_cbranch_scc1 {l3}\ns_cbranch_vccnz {l2}")
        self.L(l3)
        I(f"s_add_u32 {sFL}, {sFL}, 0x8000\ns_barrier")
        self.vm_reset()

    def setup(self):
        I = self.I
        I("s_cmp_ge_u32 s2, 256\ns_cbranch_scc1 L_end")
        I("s_load_dwordx16 s[16:31], s[0:1], 0\ns_load_dwordx16 s[32:47], s[0:1], 64\ns_load_dwordx2 s[48:49], s[0:1], 128")
        I(f"v_lshrrev_b32 v4, 6, v0\nv_and_b32 v1, 63, v0\nv_readfirstlane_b32 {sWV}, v4\nv_lshlrev_b32 v2, 4, v1\nv_mov_b32 v3, 0")
        I(f"s_and_b32 {sXCD}, s2, 7\ns_lshr_b32 {sIDX}, s2, 3")
        I(f"s_lshl_b32 {sTB}, {sXCD}, 5\ns_add_u32 {sTB}, {sTB}, {sIDX}")
        I(f"s_mul_i32 {sD0}, {sXCD}, 28\ns_add_u32 {sD0}, {sD0}, {sIDX}\ns_lshl_b32 {sD0}, {sD0}, 1")
        I(f"s_lshl_b32 {sST}, {sXCD}, 2\ns_and_b32 {T[0]}, {sIDX}, 3\ns_add_u32 {sST}, {sST}, {T[0]}\ns_lshr_b32 {sDT2}, {sIDX}, 2")
        I(f"s_and_b32 {T[0]}, {sXCD}, 1\ns_mul_i32 {T[1]}, {T[0]}, 25\ns_add_u32 {T[1]}, {T[1]}, {sIDX}")
        I(f"s_sub_u32 {T[0]}, 25, {T[0]}\ns_cmp_lt_u32 {sIDX}, {T[0]}\ns_cselect_b32 {sG1}, 1, 0")
        I(f"s_mul_i32 {T[2]}, {T[1]}, 37\ns_lshr_b32 {T[2]}, {T[2]}, 8\ns_mul_i32 {T[3]}, {T[2]}, 7\ns_sub_u32 {sDT1}, {T[1]}, {T[3]}")
        I(f"s_lshr_b32 {T[0]}, {sXCD}, 1\ns_mul_i32 {T[0]}, {T[0]}, 7\ns_add_u32 {sFT}, {T[0]}, {T[2]}")
        I(f"s_mov_b32 {sLAY}, 0\ns_mov_b32 {sLOFF}, 0\ns_mov_b32 {sXB}, {WS_XB0}\ns_mov_b32 {sREC}, {WS_REC0}\ns_mov_b32 {sNEED}, 2\ns_mov_b32 {sFL}, {WS_FLAGS}")
        I("s_waitcnt lgkmcnt(0)")
        I("s_mov_b32 s4, s48\ns_mov_b32 s5, s49\ns_mov_b32 s6, 0x10000000\ns_mov_b32 s7, 0x20000")
        I("s_mov_b32 s8, s36\ns_mov_b32 s9, s37\ns_mov_b32 s10, 7340032\ns_mov_b32 s11, 0x20000")
        I("s_mov_b32 s12, s40\ns_mov_b32 s13, s41\ns_mov_b32 s14, 7340032\ns_mov_b32 s15, 0x20000")
        I("s_mov_b32 s52, s44\ns_mov_b32 s53, s45\ns_mov_b32 s54, 1835008\ns_mov_b32 s55, 0x20000")
        I(f"s_mov_b32 {sSTB}, 8")

    def first_loads(self):
        I = self.I
        l = self.new("Lp")
        I(f"s_cmp_ge_u32 {sIDX}, 28\ns_cbranch_scc1 {l}")
        I(f"s_lshl_b32 {T[0]}, {sD0}, 9\ns_lshl_b32 {T[1]}, {sWV}, 8\ns_add_u32 {T[0]}, {T[0]}, {T[1]}\nv_lshl_add_u32 v4, v1, 2, {T[0]}")
        for k, p in enumerate((pARE, pAIM, pBRE, pBIM, pCRE, pCIM)):
            I(f"global_load_dword v{16+k}, v4, {p}")
        I(f"s_lshr_b32 {T[1]}, {sWV}, 1\ns_add_u32 {T[1]}, {T[1]}, {sD0}\ns_lshl_b32 {T[1]}, {T[1]}, 1\nv_mov_b32 v5, {T[1]}")
        I(f"global_load_ushort v22, v5, {pLDT}")
        I(f"s_lshl_b32 {T[1]}, {sD0}, 1\nv_mov_b32 v6, {T[1]}\nglobal_load_dword v23, v6, {pDSK}")
        self.L(l)
        self.vm_reset()
        I(f"s_mul_i32 {T[0]}, {sTB}, 7168\ns_lshl_b32 {T[1]}, {sWV}, 7\ns_add_u32 {T[0]}, {T[0]}, {T[1]}\ns_add_u32 {T[0]}, {T[0]}, 3584")
        I(f"v_lshl_add_u32 v4, v1, 1, {T[0]}")
        for j in range(8): I(f"global_load_short_d16_hi v{32+j}, v4, {pX0} offset:{896*j-3584}")
        for j in range(8): I(f"v_mov_b32 v{40+j}, 0")
        l = self.new("Lp")
        I(f"s_cmp_eq_u32 {sWV}, 3\ns_cbranch_scc1 {l}")
        sv = self.vm; self.vm = None
        for j in range(8): I(f"global_load_short_d16_hi v{40+j}, v4, {pX0} offset:{896*j-3584+512}")
        self.vm = sv
        self.L(l)
        I(f"buffer_load_dword v24, off, {sWS}, 0 sc1", tag="x0")
        I("v_mov_b32 v8, -1\nv_mov_b32 v9, -1\nv_mov_b32 v10, -1\nv_mov_b32 v11, -1\nv_lshlrev_b32 v7, 4, v0")
        I(f"s_mul_i32 {T[0]}, s2, 49152\ns_add_u32 {T[0]}, {T[0]}, {WS_FILL}")
        if self.sent:
            for k in range(12):
                I(f"buffer_store_dwordx4 v[8:11], v7, {sWS}, {T[0]} offen sc1\ns_add_u32 {T[0]}, {T[0]}, 4096")
        I("v_mov_b32 v12, 0\nv_mov_b32 v13, 0\nv_mov_b32 v14, 0\nv_mov_b32 v15, 0")
        I(f"s_lshl_b32 {T[0]}, s2, 7\ns_lshl_b32 {T[1]}, {sWV}, 5\ns_add_u32 {T[0]}, {T[0]}, {T[1]}\ns_add_u32 {T[0]}, {T[0]}, {WS_REC1}")
        I(f"s_mov_b64 exec, 3\nbuffer_store_dwordx4 v[12:15], v2, {sWS}, {T[0]} offen sc1\ns_mov_b64 exec, -1")

    def kidx(self):
        I = self.I
        I(f"s_mov_b32 {T[0]}, {KD - 0x8500}\ns_mov_b32 {T[1]}, {KD}\nv_mov_b32 v120, {KD + 1282}")
        for p in range(2):
            I(f"v_lshlrev_b32 v114, 2, v0\nv_sub_u32 v114, {2047 - 1024*p}, v114\nv_cvt_f32_i32 v115, v114")
            for e in range(0, 7, 2):
                I(f"v_subrev_f32 v116, {fl(e)}, v115\nv_subrev_f32 v117, {fl(e+1)}, v115\nv_cvt_pk_bf16_f32 v116, v116, v117")
                I(f"v_and_b32 v117, 0xffff, v116\nv_lshl_add_u32 v{100+7*p+e}, v117, 1, {T[0]}")
                if e < 6: I(f"v_lshrrev_b32 v117, 16, v116\nv_lshl_add_u32 v{100+7*p+e+1}, v117, 1, {T[0]}")
            if p == 1:
                for e in range(7):
                    I(f"v_subrev_u32 v116, {e}, v114\nv_lshl_add_u32 v117, v116, 1, {T[1]}\nv_cmp_gt_i32 vcc, 0x80, v116")
                    I(f"v_cndmask_b32 v{107+e}, v{107+e}, v117, vcc")
                    if e >= 4: I(f"v_cmp_gt_i32 vcc, 0, v116\nv_cndmask_b32 v{107+e}, v{107+e}, v120, vcc")

    def red8(self, s, q, t):
        I = self.I
        for k, src in enumerate((s, s+2, s+4, s+6, q, q+2, q+4, q+6)):
            I(f"v_add_f32_dpp v{t+k}, v{src}, v{src} row_shl:4 row_mask:0xf bank_mask:0x5")
        for k, src in enumerate((s, s+2, s+4, s+6, q, q+2, q+4, q+6)):
            I(f"v_add_f32_dpp v{t+k}, v{src+1}, v{src+1} row_shr:4 row_mask:0xf bank_mask:0xa")
        for k in range(4):
            I(f"v_add_f32_dpp v{s+k}, v{t+2*k}, v{t+2*k} row_shl:8 row_mask:0xf bank_mask:0x3")
        for k in range(4):
            I(f"v_add_f32_dpp v{s+k}, v{t+2*k+1}, v{t+2*k+1} row_shr:8 row_mask:0xf bank_mask:0xc")
        I(f"v_permlane16_swap_b32 v{s}, v{s+1}\nv_permlane16_swap_b32 v{s+2}, v{s+3}")
        I(f"v_add_f32 v{t}, v{s}, v{s+1}\nv_add_f32 v{t+2}, v{s+2}, v{s+3}")

    def quadsum(self, r):
        self.I(f"v_add_f32_dpp v{r}, v{r}, v{r} quad_perm:[1,0,3,2] row_mask:0xf bank_mask:0xf")
        self.I(f"v_add_f32_dpp v{r}, v{r}, v{r} quad_perm:[2,3,0,1] row_mask:0xf bank_mask:0xf")

    def tokstats(self, pre_barrier):
        I = self.I
        for k in range(0, 8, 2):
            I(f"v_pk_add_f32 {V(48+k,2)}, {V(32+k,2)}, {V(40+k,2)}\nv_pk_mul_f32 {V(56+k,2)}, {V(32+k,2)}, {V(32+k,2)}")
        for k in range(0, 8, 2):
            I(f"v_pk_fma_f32 {V(56+k,2)}, {V(40+k,2)}, {V(40+k,2)}, {V(56+k,2)}")
        self.red8(48, 56, 64)
        I("v_permlane32_swap_b32 v64, v66\nv_add_f32 v64, v64, v66")
        self.quadsum(64)
        I(f"s_lshl_b32 {T[0]}, {sWV}, 2\ns_add_u32 {T[0]}, {T[0]}, {NRM}\nv_lshrrev_b32 v5, 2, v1\nv_lshl_add_u32 v5, v5, 4, {T[0]}")
        I("ds_write_b32 v5, v64")
        I(f"v_and_b32 v5, 7, v1\nv_lshlrev_b32 v5, 4, v5\nv_add_u32 v5, {NRM}, v5")
        pre_barrier()
        I("s_waitcnt lgkmcnt(0)\ns_barrier\nds_read_b128 v[48:51], v5\nds_read_b128 v[52:55], v5 offset:128\ns_waitcnt lgkmcnt(0)")
        I("v_add_f32 v48, v48, v49\nv_add_f32 v52, v52, v53\nv_add_f32 v50, v50, v51\nv_add_f32 v54, v54, v55\nv_add_f32 v48, v48, v50\nv_add_f32 v52, v52, v54")

    def phase0(self):
        I = self.I
        self.wait_vm("x0")
        I(f"v_readfirstlane_b32 {sNON}, v24\ns_mov_b32 {T[2]}, 0x07060302")
        I(f"s_add_u32 {sNON}, {sNON}, 1\ns_mov_b32 {sEXP}, {sNON}")
        for k in range(8): I(f"v_perm_b32 v{72+k}, v{33+2*k}, v{32+2*k}, {T[2]}")
        I(f"s_mul_i32 {T[0]}, {sTB}, 7168\ns_lshl_b32 {T[1]}, {sWV}, 10\ns_add_u32 {T[0]}, {T[0]}, {T[1]}\ns_add_u32 {T[0]}, {T[0]}, {WS_XB0}")
        I(f"buffer_store_dwordx4 v[72:75], v2, {sWS}, {T[0]} offen sc1")
        l = self.new("Lp")
        I(f"s_cmp_eq_u32 {sWV}, 3\ns_cbranch_scc1 {l}\ns_add_u32 {T[0]}, {T[0]}, 4096")
        I(f"buffer_store_dwordx4 v[76:79], v2, {sWS}, {T[0]} offen sc1")
        self.L(l)
        self.tokstats(lambda: self.wait_vm0())
        l = self.new("Lp")
        I(f"s_cmp_lg_u32 {sWV}, 0\ns_cbranch_scc1 {l}")
        I(f"v_mov_b32 v49, v52\nv_mov_b32 v50, {sNON}\nv_mov_b32 v51, 0\ns_lshl_b32 {T[0]}, {sTB}, 7\ns_add_u32 {T[0]}, {T[0]}, {WS_REC0}")
        I(f"s_mov_b64 exec, 0xff\nbuffer_store_dwordx4 v[48:51], v2, {sWS}, {T[0]} offen sc1\ns_mov_b64 exec, -1")
        self.L(l)
        self.vm_reset()

    def w_addr(self, which):
        I = self.I
        stride, krange, tile = (3584, 512, sFT) if which == 1 else (4096, 448, sST)
        I(f"v_lshrrev_b32 v4, 3, v1\ns_mul_i32 {T[0]}, {sWV}, {krange}\nv_add_u32 v4, {T[0]}, v4\ns_mov_b32 {T[1]}, {stride}\nv_mul_lo_u32 v4, v4, {T[1]}")
        I("v_lshrrev_b32 v5, 2, v1\nv_and_b32 v5, 4, v5\nv_and_b32 v6, 7, v1\nv_xor_b32 v5, v5, v6")
        I(f"s_lshl_b32 {T[0]}, {tile}, 7\nv_lshl_add_u32 v5, v5, 4, {T[0]}\nv_add_u32 v4, v4, v5\nv_add_u32 v5, {8*stride-1024}, v4")
        self.tr_addr(6, 7)

    def tr_addr(self, d0, d1):
        I = self.I
        I(f"v_lshrrev_b32 v8, 5, v1\nv_lshlrev_b32 v8, 3, v8\nv_bfe_u32 v9, v1, 2, 2\nv_add_u32 v8, v8, v9\nv_lshlrev_b32 v8, 7, v8")
        I(f"s_mul_i32 {T[4]}, {sWV}, 24576\nv_add_u32 v8, {T[4]}, v8")
        I("v_and_b32 v9, 1, v1\nv_lshlrev_b32 v9, 4, v9\nv_bfe_u32 v10, v1, 1, 1\nv_lshl_add_u32 v9, v10, 3, v9\nv_add_u32 v8, v8, v9")
        I(f"v_bfe_u32 v9, v1, 4, 1\nv_add_u32 v9, {sWV}, v9\nv_bfe_u32 v10, v1, 3, 1\nv_lshlrev_b32 v10, 1, v10")
        I(f"v_add_u32 v11, v9, v10\nv_and_b32 v11, 3, v11\nv_lshl_add_u32 v{d0}, v11, 5, v8")
        I(f"v_xor_b32 v11, 2, v11\nv_lshl_add_u32 v{d1}, v11, 5, v8")

    def w_dma(self, which, ks, slot, tag):
        srd, stride = (sW1, 3584) if which == 1 else (sW2, 4096)
        I = self.I
        I(f"s_mul_i32 {T[6]}, {sWV}, 24576\ns_add_u32 m0, {T[6]}, {slot*2048}\ns_mov_b32 {T[7]}, {ks*16*stride}")
        I(f"buffer_load_dwordx4 v4, {srd}, {T[7]} offen lds", tag=tag)
        I(f"buffer_load_dwordx4 v5, {srd}, {T[7]} offen offset:1024 lds", tag=tag)

    def w_tr(self, dst, slot, a0=6, a1=7):
        for t in range(2):
            for q in range(2):
                self.I(f"ds_read_b64_tr_b16 {dst(4*t+2*q)}, v{(a0, a1)[t]} offset:{slot*2048+512*q}")

    def weights_upfront(self):
        I = self.I
        l1, l2 = self.new("Lw"), self.new("Lw")
        I(f"s_cmp_eq_u32 {sG1}, 0\ns_cbranch_scc1 {l1}")
        self.vm_reset()
        self.w_addr(1)
        for ks in range(12): self.w_dma(1, ks, ks, ("w", ks))
        for ks in range(32):
            self.wait_vm(("w", ks))
            self.w_tr(lambda o, ks=ks: A(8*ks+o, 2), ks % 12)
            if ks + 12 < 32:
                I("s_waitcnt lgkmcnt(0)")
                self.w_dma(1, ks + 12, ks % 12, ("w", ks + 12))
        I("s_waitcnt lgkmcnt(0)")
        self.L(l1)
        I(f"s_cmp_ge_u32 {sIDX}, 28\ns_cbranch_scc1 {l2}")
        self.vm_reset()
        self.w_addr(2)
        for ks in range(12): self.w_dma(2, ks, ks, ("w", ks))
        slot_of = {}
        for ks in range(16):
            self.wait_vm(("w", ks))
            self.w_tr(lambda o, ks=ks: V(128+8*ks+o, 2), ks % 12)
            I("s_waitcnt lgkmcnt(0)")
            if ks < 4: self.w_dma(2, ks + 12, ks, ("w", ks + 12))
        for ks in range(16, 28): self.w_dma(2, ks, ks - 16, ("w", ks))
        self.wait_vm0()
        self.L(l2)
        self.vm_reset()

    def cmul(self, d, a, b, t):
        self.I(f"v_pk_mul_f32 {V(t,2)}, {V(a,2)}, {V(b,2)} op_sel_hi:[0,1]")
        self.I(f"v_pk_fma_f32 {V(d,2)}, {V(a,2)}, {V(b,2)}, {V(t,2)} op_sel:[1,1,0] op_sel_hi:[1,0,1] neg_lo:[1,0,0]")

    def kgen(self):
        I = self.I
        LOG2E = 1.0 / math.log(2.0)
        I(f"v_lshlrev_b32 v22, 16, v22\nv_mul_f32 v22, {fl(LOG2E)}, v22\nv_exp_f32 v22, v22")
        I(f"v_readfirstlane_b32 {sDK1}, v23")
        I(f"v_cvt_pk_bf16_f32 v22, v22, v22\nv_and_b32 v22, 0xffff0000, v22")
        I(f"s_lshl_b32 {sDK0}, {sDK1}, 16\ns_and_b32 {sDK1}, {sDK1}, 0xffff0000")
        for m in range(2):
            B = 32 + 32*m
            up = (lambda d, s: I(f"v_lshlrev_b32 v{d}, 16, v{s}")) if m == 0 else (lambda d, s: I(f"v_and_b32 v{d}, 0xffff0000, v{s}"))
            up(B, 16); up(B+1, 17); up(B+24, 18); up(B+25, 19); up(B+26, 20); up(B+27, 21)
            I(f"v_mul_f32 v{B}, v22, v{B}\nv_mul_f32 v{B+1}, v22, v{B+1}\nv_mul_f32 v{B+24}, v22, v{B+24}\nv_mul_f32 v{B+25}, v22, v{B+25}")
            I(f"v_mul_f32 v{B}, {fl(LOG2E)}, v{B}\nv_mul_f32 v{B+1}, 0.15915494, v{B+1}")
            self.cmul(B+8, B+26, B+24, B+20)
        for lam, o in ((1.0, 2), (8.0, 4), (256.0, 6)):
            for m in range(2):
                B = 32 + 32*m
                I(f"v_mul_f32 v{B+24}, {fl(lam)}, v{B}\nv_mul_f32 v{B+25}, {fl(lam)}, v{B+1}\nv_exp_f32 v{B+24}, v{B+24}\nv_fract_f32 v{B+25}, v{B+25}")
                I(f"v_cos_f32 v{B+o}, v{B+25}\nv_sin_f32 v{B+o+1}, v{B+25}")
            for m in range(2):
                B = 32 + 32*m
                I(f"v_pk_mul_f32 {V(B+o,2)}, {V(B+o,2)}, {V(B+24,2)} op_sel_hi:[1,0]")
        I(f"s_lshr_b32 {T[0]}, {sWV}, 1\ns_mul_i32 {T[0]}, {T[0]}, {UVCH}\ns_and_b32 {T[1]}, {sWV}, 1\ns_lshl_b32 {T[1]}, {T[1]}, 9\ns_add_u32 {T[0]}, {T[0]}, {T[1]}")
        I(f"v_lshl_add_u32 v4, v1, 3, {T[0]}")
        pk = [0]
        def put(row, r0, neg):
            p = 24 + 2*(pk[0] % 4); pk[0] += 1
            n = "-" if neg else ""
            I(f"v_cvt_pk_bf16_f32 v{p}, v{32+r0}, {n}v{33+r0}\nv_cvt_pk_bf16_f32 v{p+1}, v{64+r0}, {n}v{65+r0}")
            I(f"ds_write_b64 v4, {V(p,2)} offset:{row*UVROW}")
        def mul2(d, a, b, t):
            for m in range(2):
                B = 32 + 32*m
                I(f"v_pk_mul_f32 {V(B+t,2)}, {V(B+a,2)}, {V(B+b,2)} op_sel_hi:[0,1]")
            for m in range(2):
                B = 32 + 32*m
                I(f"v_pk_fma_f32 {V(B+d,2)}, {V(B+a,2)}, {V(B+b,2)}, {V(B+t,2)} op_sel:[1,1,0] op_sel_hi:[1,0,1] neg_lo:[1,0,0]")
        us = [(1, 16, 8, 2), (2, 10, 16, 2), (3, 16, 10, 2), (4, 12, 16, 2), (5, 16, 12, 2), (6, 14, 16, 2), (7, 16, 14, 2),
              (8, 8, 8, 6), (9, 10, 10, 6), (10, 12, 12, 6), (11, 14, 14, 6), (12, 8, 8, 6), (13, 12, 12, 6), (14, 8, 8, 6), (15, 12, 12, 6),
              (16, 8, 8, 6), (17, 8, 8, 6), (18, 8, 8, 6), (19, 8, 8, 6), (20, 8, 8, 6)]
        I("v_mov_b32 v96, 0x3f80\nv_mov_b32 v97, 0x3f80")
        I(f"ds_write_b64 v4, v[96:97] offset:{21*UVROW}")
        put(0, 8, True); put(22, 4, False)
        for j in range(2, 32):
            mul2(18, 4 if j == 2 else 18, 4, 22)
            if us:
                row, d, s, f = us.pop(0)
                mul2(d, s, f, 20)
                put(21 + j, 18, False); put(row, d, True)
            else:
                put(21 + j, 18, False)
        I(f"s_lshr_b32 {T[2]}, {sWV}, 1\ns_mul_i32 {T[3]}, {T[2]}, {KDH}\ns_add_u32 {T[3]}, {T[3]}, {KD}")
        I(f"v_mov_b32 v5, 0\nv_mov_b32 v6, {T[3]}\nds_write_b16 v6, v5 offset:1282")
        I(f"s_mul_i32 {T[0]}, {T[2]}, {UVCH}\nv_and_b32 v7, 15, v1\nv_lshrrev_b32 v8, 4, v1\nv_lshl_add_u32 v9, v8, 4, {T[0]}")
        I(f"s_mov_b32 {T[1]}, {UVROW}\nv_mul_lo_u32 v10, v7, {T[1]}\nv_add_u32 v10, v10, v9")
        I(f"v_min_u32 v11, 4, v7\nv_add_u32 v11, 16, v11\nv_mul_lo_u32 v11, v11, {T[1]}\nv_add_u32 v11, v11, v9")
        I(f"s_and_b32 {T[4]}, {sWV}, 1\ns_lshl_b32 {T[5]}, {T[4]}, 4\ns_add_u32 {T[6]}, {T[5]}, 21\ns_mul_i32 {T[6]}, {T[6]}, {UVROW}\nv_add_u32 v12, {T[6]}, v10")
        I("s_waitcnt lgkmcnt(0)\ns_barrier")
        def rd(s):
            b = 32 + 12*(s % 4)
            I(f"ds_read_b128 {V(b,4)}, v10 offset:{64*s}\nds_read_b128 {V(b+4,4)}, v12 offset:{64*s}\nds_read_b128 {V(b+8,4)}, v11 offset:{64*s}")
        for s in range(3): rd(s)
        for s in range(16):
            if s + 3 < 16: rd(s + 3)
            I(f"s_waitcnt lgkmcnt({3*min(3, 15-s)})")
            b = 32 + 12*(s % 4)
            c0 = "0" if s == 0 else "v[16:19]"; c1 = "0" if s == 0 else "v[20:23]"
            I(f"v_mfma_f32_16x16x32_bf16 v[16:19], {V(b,4)}, {V(b+4,4)}, {c0}\nv_mfma_f32_16x16x32_bf16 v[20:23], {V(b+8,4)}, {V(b+4,4)}, {c1}")
        I(f"v_add_u32 v7, {T[5]}, v7")
        I(f"v_lshlrev_b32 v9, 3, v7\nv_lshl_add_u32 v9, v8, 2, v9\nv_lshlrev_b32 v10, 2, v7\nv_add_u32 v10, 256, v10\nv_lshlrev_b32 v11, 1, v7\nv_add_u32 v11, 384, v11")
        I("v_cmp_eq_u32 vcc, 2, v8\nv_cndmask_b32 v9, v9, v10, vcc\nv_mov_b32 v10, 2\nv_cmp_eq_u32 vcc, 3, v8\nv_cndmask_b32 v9, v9, v11, vcc\nv_cndmask_b32 v10, v10, 64, vcc")
        I(f"v_add_u32 v10, v9, v10\nv_lshl_add_u32 v9, v9, 1, {T[3]}\nv_lshl_add_u32 v10, v10, 1, {T[3]}")
        I(f"v_add_u32 v11, 512, v7\nv_mov_b32 v12, 640\nv_cmp_eq_u32 vcc, 16, v1\nv_cndmask_b32 v11, v11, v12, vcc\nv_lshl_add_u32 v11, v11, 1, {T[3]}")
        I("v_cvt_pk_bf16_f32 v16, v16, v17\nv_cvt_pk_bf16_f32 v17, v18, v19\nv_cvt_pk_bf16_f32 v20, v20, v21\nv_cvt_pk_bf16_f32 v21, v22, v23")
        I("ds_write_b32 v9, v16\nds_write_b32 v10, v17")
        I(f"s_lshr_b32 exec_lo, 0x1ffff, {T[4]}\ns_mov_b32 exec_hi, 0\nds_write_b16 v11, v20")
        I("s_mov_b32 exec_lo, 0xffff\nds_write_b16_d16_hi v11, v20 offset:64\nds_write_b16 v11, v21 offset:128\nds_write_b16_d16_hi v11, v21 offset:192\ns_mov_b64 exec, -1")
        I("s_waitcnt lgkmcnt(0)\ns_barrier")
        I(f"v_lshlrev_b32 v4, 5, v0\nv_add_u32 v4, {KC}, v4")
        def gat(p, ch):
            g = 32 + 8*(2*p+ch)
            for e in range(7): I(f"ds_read_u16 v{g+e}, v{100+7*p+e} offset:{ch*KDH}", tag=("g", p, ch))
        gat(0, 0); gat(0, 1)
        I(f"v_mov_b32 v12, 0\nv_mov_b32 v13, 0\nv_mov_b32 v14, 0\nv_mov_b32 v15, 0\nv_add_u32 v5, {KC+512*32}, v2\nv_add_u32 v6, {U0}, v2")
        for p in range(2):
            for ch in range(2):
                g = 32 + 8*(2*p+ch); o = 64 + 8*(2*p+ch)
                self.wait_lg(("g", p, ch))
                if p == 0: gat(1, ch)
                for k, e in enumerate((0, 2, 1, 3, 2, 4, 3, 5)): I(f"v_lshl_or_b32 v{o+k}, v{g+e+1}, 16, v{g+e}")
                I(f"ds_write_b128 v4, {V(o,4)} offset:{ch*KCH+8192*p}\nds_write_b128 v4, {V(o+4,4)} offset:{ch*KCH+8192*p+16}")
        l = self.new("Lk")
        I(f"s_cmp_lg_u32 {sWV}, 0\ns_cbranch_scc1 {l}")
        I(f"s_mov_b64 exec, 0x3f\nds_write_b128 v5, v[12:15]\nds_write_b128 v5, v[12:15] offset:{KCH}")
        I(f"s_mov_b64 exec, 0x3fffffff\nds_write_b128 v6, v[12:15]\nds_write_b128 v6, v[12:15] offset:{USTR}\ns_mov_b64 exec, -1")
        self.L(l)
        I("s_waitcnt lgkmcnt(0)")

    def retry(self, lab, sleep=1):
        l = self.new("Lr")
        self.I(f"s_cbranch_vccz {l}\ns_add_u32 {sSPIN}, {sSPIN}, 1\ns_cmp_gt_u32 {sSPIN}, {SPINMAX}\ns_cbranch_scc1 {l}")
        self.I(f"s_sleep {sleep}\ns_branch {lab}")
        self.L(l)

    def conv(self):
        I = self.I
        I("s_barrier")
        I(f"s_mov_b32 {T[0]}, 7168\nv_mul_lo_u32 v4, v0, {T[0]}\ns_lshl_b32 {T[0]}, {sD0}, 4\nv_add_u32 v4, {T[0]}, v4")
        I(f"s_lshl_b32 {T[0]}, {sWV}, 13\ns_add_u32 {T[0]}, {T[0]}, {sREC}\ns_add_u32 {T[1]}, {T[0]}, 4096\ns_mov_b32 {sSPIN}, 0")
        lp = self.new("Lc")
        self.L(lp)
        self.vm_reset()
        for i in range(8): I(f"buffer_load_dwordx3 {V(48+4*i,3)}, v2, {sWS}, {T[i>>2]} offen offset:{1024*(i&3)} sc1")
        I(f"buffer_load_dwordx4 v[80:83], v4, {sWS}, {sXB} offen sc1\nbuffer_load_dwordx4 v[84:87], v4, {sWS}, {sXB} offen offset:16 sc1")
        I(f"s_lshl_b32 {T[2]}, {sWV}, 12\ns_add_u32 {T[2]}, {T[2]}, {BR}")
        I(f"v_lshrrev_b32 v5, 1, v1\nv_lshrrev_b32 v6, 5, v1\nv_xor_b32 v5, v5, v6\nv_lshlrev_b32 v5, 4, v5\nv_and_b32 v6, 1, v1\nv_lshl_add_u32 v5, v6, 3, v5")
        I(f"v_add_u32 v5, {T[2]}, v5\nv_xor_b32 v6, 32, v5")
        I(f"v_bfe_u32 v7, v1, 2, 2\nv_lshlrev_b32 v7, 4, v7\nv_lshl_add_u32 v7, v1, 6, v7\nv_add_u32 v7, {T[2]}, v7")
        I("v_xor_b32 v8, 16, v7\nv_xor_b32 v9, 32, v7\nv_xor_b32 v10, 48, v7")
        I(f"v_lshl_add_u32 v11, v1, 5, {T[2]}\nv_lshlrev_b32 v14, 4, v0\nv_add_u32 v14, {U0+480}, v14")
        I(f"v_mov_b32 v12, {fl(1/448)}\nv_mov_b32 v13, {fl(1/448)}\ns_mov_b32 s80, 0\ns_mov_b32 s81, {fl(1e-5)}")
        self.wait_vm0()
        I(f"v_xor_b32 v15, {sEXP}, v50")
        for i in range(1, 8): I(f"v_bitop3_b32 v15, v15, v{50+4*i}, {sEXP} bitop3:0xf6")
        I(f"v_max_u32 v51, v80, v84\nv_cmp_eq_u32 {sP1}, -1, v51\nv_cmp_ne_u32 vcc, 0, v15\ns_or_b64 vcc, vcc, {sP1}")
        self.retry(lp)
        I(f"s_sub_u32 {sNEED}, {sNEED}, 1\ns_cmp_gt_i32 {sNEED}, 0\ns_cbranch_scc1 {lp}")
        self.stamp(1)
        for i in range(8):
            R = 48 + 4*i
            I(f"v_pk_fma_f32 {V(R,2)}, {V(R,2)}, v[12:13], {sP0}")
        for i in range(8): I(f"v_fma_f32 v{49+4*i}, -v{48+4*i}, v{48+4*i}, v{49+4*i}")
        for i in range(8): I(f"v_max_f32 v{49+4*i}, s81, v{49+4*i}")
        for i in range(8): I(f"v_rsq_f32 v{50+4*i}, v{49+4*i}")
        for i in range(8):
            I(f"v_mul_f32 v{51+4*i}, -v{48+4*i}, v{50+4*i}")
            I(f"ds_write_b64 v{5+(i&1)}, {V(50+4*i,2)} offset:{512*i}")
        for j in range(8):
            for ch in range(2):
                src = 80 + 4*ch + (j >> 1)
                I(f"v_lshlrev_b32 v{88+2*j+ch}, 16, v{src}" if j % 2 == 0 else f"v_and_b32 v{88+2*j+ch}, 0xffff0000, v{src}")
        I("s_waitcnt lgkmcnt(0)")
        for k in range(4): I(f"ds_read_b128 {V(48+4*k,4)}, v{7+k}", tag=("st", k))
        for j in range(8):
            if j % 2 == 0: self.wait_lg(("st", j >> 1))
            I(f"v_pk_fma_f32 {V(64+2*j,2)}, {V(88+2*j,2)}, {V(48+2*j,2)}, {V(48+2*j,2)} op_sel:[0,0,1] op_sel_hi:[1,0,1]")
        for ch in range(2):
            for k in range(4): I(f"v_cvt_pk_bf16_f32 v{104+4*ch+k}, v{64+4*k+ch}, v{66+4*k+ch}")
            I(f"ds_write_b128 v14, {V(104+4*ch,4)} offset:{ch*USTR}")
        for ch in range(2):
            for j in range(8): I(f"v_fma_f32 v{112+8*ch+j}, v{64+2*j+ch}, {(sDK0, sDK1)[ch]}, v{88+2*j+ch}")
            I(f"ds_write_b128 v11, {V(112+8*ch,4)} offset:{2048*ch}\nds_write_b128 v11, {V(116+8*ch,4)} offset:{2048*ch+16}")
        I(f"s_lshr_b32 {T[0]}, {sWV}, 1\ns_and_b32 {T[1]}, {sWV}, 1\nv_and_b32 v9, 15, v1\nv_lshrrev_b32 v10, 4, v1")
        I(f"s_mul_i32 {T[2]}, {T[0]}, {USTR}\ns_lshl_b32 {T[3]}, {T[1]}, 8\ns_sub_u32 {T[2]}, {T[2]}, {T[3]}\ns_add_u32 {T[2]}, {T[2]}, {U0}")
        I(f"v_lshlrev_b32 v4, 5, v9\nv_lshl_add_u32 v4, v10, 4, v4\nv_add_u32 v4, {T[2]}, v4")
        I(f"s_mul_i32 {T[2]}, {T[0]}, {KCH}\ns_lshl_b32 {T[3]}, {T[1]}, 10\ns_sub_u32 {T[2]}, {T[2]}, {T[3]}\ns_add_u32 {T[2]}, {T[2]}, {KC + 3*32 + 3*8}")
        I(f"v_lshlrev_b32 v5, 6, v10\nv_lshrrev_b32 v6, 2, v9\nv_lshlrev_b32 v6, 5, v6\nv_sub_u32 v5, v5, v6\nv_and_b32 v6, 3, v1\nv_lshlrev_b32 v6, 3, v6\nv_sub_u32 v5, v5, v6\nv_add_u32 v5, {T[2]}, v5")
        I(f"s_lshl_b32 {T[2]}, {T[0]}, 11\ns_lshl_b32 {T[3]}, {T[1]}, 13\ns_add_u32 {T[2]}, {T[2]}, {BR}\ns_add_u32 {T[4]}, {T[2]}, {T[3]}\ns_xor_b32 {T[3]}, {T[3]}, 8192\ns_add_u32 {T[5]}, {T[2]}, {T[3]}")
        I(f"v_lshlrev_b32 v7, 6, v9\nv_lshl_add_u32 v7, v10, 4, v7\nv_add_u32 v6, {T[4]}, v7\nv_add_u32 v7, {T[5]}, v7")
        I(f"v_lshlrev_b32 v8, 5, v9\nv_and_b32 v9, 1, v10\nv_lshl_add_u32 v8, v9, 9, v8\nv_lshrrev_b32 v10, 1, v10\nv_lshl_add_u32 v8, v10, 4, v8")
        I(f"s_add_u32 {T[5]}, {sD0}, {T[0]}\ns_lshl_b32 {T[5]}, {T[5]}, 12\ns_lshl_b32 {T[3]}, {T[1]}, 11\ns_add_u32 {T[5]}, {T[5]}, {T[3]}\ns_add_u32 {T[5]}, {T[5]}, {sLOFF}\ns_add_u32 {T[5]}, {T[5]}, {WS_X1}")
        IMM = (0, 1024, 4096, 5120)
        I("s_waitcnt lgkmcnt(0)\ns_barrier")
        self.stamp(2)
        la, lb = self.new("Lc"), self.new("Lc")
        I(f"s_cmp_eq_u32 {T[1]}, 0\ns_cbranch_scc0 {la}")
        for k in range(4): I(f"ds_read_b128 {V(16+4*k,4)}, v6 offset:{IMM[k]}")
        for k in range(16): I(f"v_mov_b32 v{32+k}, 0")
        I(f"s_branch {lb}")
        self.L(la)
        self.lg = self.lg[:-4]
        for k in range(4): I(f"ds_read_b128 {V(32+4*k,4)}, v6 offset:{IMM[k]}", tag="init")
        for k in range(16): I(f"v_mov_b32 v{16+k}, 0")
        self.L(lb)
        order = (0, 7, 1, 6, 2, 5, 3, 4)
        steps = [(sg, m) for sg in range(4) for m in order]
        kslot = lambda n: 100 + 4*(n % 3)
        def kload(n):
            sg, m = steps[n]; off = (63 - 8*m - sg) * 256
            return [(f"ds_read_b64 {V(kslot(n),2)}, v5 offset:{off}", ("k", n)), (f"ds_read_b64 {V(kslot(n)+2,2)}, v5 offset:{off+32}", ("k", n))]
        uslot = {(0, c): c for c in range(8)}
        free = [8, 9, 10, 11, 12]
        def uload(sg, c): return (f"ds_read_b128 {V(48+4*uslot[(sg,c)],4)}, v4 offset:{512*c+64*(7-sg)}", ("u", sg, c))
        for x in kload(0) + [uload(0, c) for c in range(8)] + kload(1): I(*x)
        self.wait_lg("init")
        q = []
        for n, (sg, m) in enumerate(steps):
            pos = n % 8
            if n + 2 < len(steps): q = kload(n + 2) + q
            if sg < 3:
                if pos == 0:
                    for c in range(5):
                        uslot[(sg+1, c)] = free.pop(0); q.append(uload(sg+1, c))
                if pos in (1, 3, 5):
                    c = 5 + pos // 2; uslot[(sg+1, c)] = uslot[(sg, 7 - pos // 2)]; q.append(uload(sg+1, c))
                if pos == 7: free = [uslot[(sg, c)] for c in range(5)]
            self.wait_lg(("k", n))
            for j in range(m, 8):
                self.wait_lg(("u", sg, j - m))
                I(f"v_mfma_f32_16x16x32_bf16 {V(16+4*j,4)}, {V(kslot(n),4)}, {V(48+4*uslot[(sg,j-m)],4)}, {V(16+4*j,4)}")
                if q: I(*q.pop(0))
        assert not q
        self.stamp(3)
        la, lb = self.new("Lc"), self.new("Lc")
        I(f"s_cmp_eq_u32 {T[1]}, 0\ns_cbranch_scc0 {la}")
        for own, oth, nxt in ((16, 32, lb), (32, 16, None)):
            for k in range(4): I(f"ds_write_b128 v6, {V(oth+4*k,4)} offset:{IMM[k]}")
            I("s_waitcnt lgkmcnt(0)\ns_barrier")
            for k in range(4): I(f"ds_read_b128 {V(48+4*k,4)}, v7 offset:{IMM[k]}", tag=("p", k))
            for k in range(4):
                self.wait_lg(("p", k))
                I(f"v_pk_add_f32 {V(48+4*k,2)}, {V(48+4*k,2)}, {V(own+4*k,2)}\nv_pk_add_f32 {V(50+4*k,2)}, {V(50+4*k,2)}, {V(own+4*k+2,2)}")
            if nxt:
                I(f"s_branch {nxt}"); self.L(la)
        self.L(lb)
        for k in range(8): I(f"v_cvt_pk_bf16_f32 v{64+k}, v{48+2*k}, v{49+2*k}")
        for k in (0, 4):
            I(f"v_permlane16_swap_b32 v{64+k}, v{66+k}\nv_permlane16_swap_b32 v{65+k}, v{67+k}")
        I(f"buffer_store_dwordx4 v[64:67], v8, {sWS}, {T[5]} offen sc1\nbuffer_store_dwordx4 v[68:71], v8, {sWS}, {T[5]} offen offset:1024 sc1")

    def norm(self):
        I = self.I
        I("s_barrier")
        I(f"v_lshlrev_b32 v4, 12, v1\ns_lshl_b32 {T[0]}, {sWV}, 18\ns_add_u32 {T[0]}, {T[0]}, {sLOFF}\ns_lshl_b32 {T[1]}, {sTB}, 4")
        I(f"s_add_u32 {T[1]}, {T[1]}, {T[0]}\ns_add_u32 {T[1]}, {T[1]}, {WS_X1}\ns_add_u32 {T[2]}, {T[1]}, 0x100000\ns_mov_b32 {sSPIN}, 0")
        I(f"s_lshl_b32 {T[3]}, {sTB}, 9\ns_add_u32 {T[3]}, {T[3]}, {T[0]}\ns_add_u32 {T[3]}, {T[3]}, {WS_HF}\ns_add_u32 {T[4]}, {T[3]}, 0x100000")
        I("v_mov_b32 v76, 0\nv_mov_b32 v77, 0\nv_mov_b32 v78, 0\nv_mov_b32 v79, 0")
        I("v_lshrrev_b32 v6, 5, v1\nv_lshlrev_b32 v6, 17, v6\nv_and_b32 v7, 31, v1\nv_lshl_add_u32 v6, v7, 4, v6")
        lp, l = self.new("Ln"), self.new("Ln")
        self.L(lp)
        I(f"buffer_load_dwordx4 v[72:75], v4, {sWS}, {T[1]} offen sc1\ns_cmp_eq_u32 {sWV}, 3\ns_cbranch_scc1 {l}")
        I(f"buffer_load_dwordx4 v[76:79], v4, {sWS}, {T[2]} offen sc1")
        self.L(l)
        self.wait_vm0()
        if self.sent:
            I("v_max_u32 v5, v72, v76\nv_cmp_eq_u32 vcc, -1, v5")
            self.retry(lp, 2)
        self.stamp(5)
        for k in range(8):
            I(f"v_lshlrev_b32 v{32+2*k}, 16, v{72+k}\nv_and_b32 v{33+2*k}, 0xffff0000, v{72+k}")
        self.tokstats(lambda: None)
        I(f"v_mul_f32 v48, {fl(1/448)}, v48\nv_mul_f32 v52, {fl(1/448)}, v52\nv_fma_f32 v52, -v48, v48, v52\nv_max_f32 v52, 0, v52")
        I(f"v_add_f32 v49, {fl(1e-5)}, v52\nv_rsq_f32 v49, v49\nv_sub_f32 v48, 0, v48\nv_mul_f32 v50, v49, v49\nv_mov_b32 v51, {fl(1e-5)}\nv_fma_f32 v50, v52, v50, v51")
        I("v_rsq_f32 v50, v50\nv_mul_f32 v49, v49, v50")
        for j in range(8): I(f"v_readlane_b32 s{84+j}, v48, {j}")
        for j in range(8): I(f"v_readlane_b32 s{92+j}, v49, {j}")
        for k in range(8): I(f"v_pk_add_f32 {V(32+2*k,2)}, {V(32+2*k,2)}, s[{84+(2*k&7)}:{85+(2*k&7)}]")
        for k in range(8): I(f"v_pk_mul_f32 {V(32+2*k,2)}, {V(32+2*k,2)}, s[{92+(2*k&7)}:{93+(2*k&7)}]")
        for k in range(8): I(f"v_cvt_pk_bf16_f32 v{72+k}, v{32+2*k}, v{33+2*k}")
        l = self.new("Ln")
        I(f"buffer_store_dwordx4 v[72:75], v6, {sWS}, {T[3]} offen sc1\ns_cmp_eq_u32 {sWV}, 3\ns_cbranch_scc1 {l}")
        I(f"buffer_store_dwordx4 v[76:79], v6, {sWS}, {T[4]} offen sc1")
        self.L(l)
        self.vm_reset()

    def gemm(self, which):
        I = self.I
        nks, NKS, buf, dt = (32, 128, WS_HF, sDT1) if which == 1 else (28, 112, WS_GF, sDT2)
        ng = nks // 4
        ACC = (16, 48); RING = 80
        self.vm_reset()
        I(f"s_barrier\ns_mov_b32 {sSPIN}, 0")
        lres = self.new("Lg")
        self.L(lres)
        I(f"v_lshrrev_b32 v4, 5, v1\nv_lshlrev_b32 v4, 4, v4\ns_lshl_b32 {T[0]}, {sFT if which == 1 else sST}, 7\ns_lshl_b32 {T[1]}, {sWV}, 5\ns_add_u32 {T[0]}, {T[0]}, {T[1]}")
        I(f"v_add_u32 v5, {T[0]}, v4\nglobal_load_dwordx4 v[32:35], v5, {pB1 if which == 1 else pB2}", tag="init")
        if which == 2:
            I(f"v_and_b32 v6, 31, v1\nv_lshl_add_u32 v5, v6, 12, v5\ns_lshl_b32 {T[1]}, {dt}, 18\ns_add_u32 {T[1]}, {T[1]}, {sLOFF}\ns_add_u32 {T[1]}, {T[1]}, {WS_X1}\ns_add_u32 {T[2]}, {T[1]}, 0x20000")
            I(f"buffer_load_dwordx4 v[36:39], v5, {sWS}, {T[1]} offen sc1\nbuffer_load_dwordx4 v[40:43], v5, {sWS}, {T[2]} offen sc1", tag="init")
        I(f"s_mul_i32 {T[0]}, {dt}, {2*NKS*1024}\ns_mul_i32 {T[1]}, {sWV}, {nks*1024}\ns_add_u32 {T[0]}, {T[0]}, {T[1]}\ns_add_u32 {T[0]}, {T[0]}, {sLOFF}\ns_add_u32 {T[0]}, {T[0]}, {buf}")
        goff = lambda g: (g * 4096 if g < ng else NKS*1024 + (g - ng) * 4096)
        SO = (T[1], T[2], T[3])
        def loads(g, tag=True):
            for k in range(4): I(f"buffer_load_dwordx4 {V(RING+16*(g%3)+4*k,4)}, v2, {sWS}, {SO[g%3]} offen offset:{1024*k} sc1", tag=("a", g))
        def issue(g):
            I(f"s_add_u32 {SO[g%3]}, {T[0]}, {goff(g)}"); loads(g)
        if which == 2: self.tr_addr(6, 7)
        for x in (1, 2, 3):
            I(f"s_add_u32 {T[4]}, {sWV}, {x}\ns_and_b32 {T[4]}, {T[4]}, 3\ns_mul_i32 {T[4]}, {T[4]}, 6144\ns_add_u32 {T[4]}, {T[4]}, {XCH + (x-1)*2048}\nv_add_u32 v{7+x}, {T[4]}, v2")
        I(f"s_mul_i32 {T[4]}, {sWV}, 6144\ns_add_u32 {T[4]}, {T[4]}, {XCH}\nv_add_u32 v11, {T[4]}, v2")
        if which == 1:
            I(f"s_mul_i32 {T[5]}, {dt}, {224*1024}\ns_lshl_b32 {T[4]}, {sFT}, 2\ns_add_u32 {T[4]}, {T[4]}, {sWV}\ns_lshl_b32 {T[4]}, {T[4]}, 10\ns_add_u32 {T[5]}, {T[5]}, {T[4]}")
            I(f"s_add_u32 {T[5]}, {T[5]}, {sLOFF}\ns_add_u32 {T[5]}, {T[5]}, {WS_GF}\ns_add_u32 {T[6]}, {T[5]}, {112*1024}")
        else:
            lo, le = self.new("Lg"), self.new("Lg")
            I(f"s_cmp_eq_u32 {sLAY}, 0\ns_cbranch_scc0 {lo}")
            I(f"s_lshl_b32 {T[4]}, {sST}, 2\ns_add_u32 {T[4]}, {T[4]}, {sWV}\ns_mul_i32 {T[5]}, {T[4]}, 14336\ns_lshl_b32 {T[6]}, {dt}, 10\ns_add_u32 {T[5]}, {T[5]}, {T[6]}\ns_add_u32 {T[5]}, {T[5]}, {WS_XB1}\ns_add_u32 {T[6]}, {T[5]}, 512")
            I(f"v_lshrrev_b32 v12, 5, v1\nv_mul_u32_u24 v12, 7168, v12\nv_and_b32 v13, 31, v1\nv_lshl_add_u32 v12, v13, 4, v12")
            I(f"s_lshl_b32 {T[7]}, {T[4]}, 8\ns_add_u32 {T[7]}, {T[7]}, {WS_REC1}\ns_branch {le}")
            self.L(lo)
            I(f"s_lshl_b32 {T[4]}, {sST}, 2\ns_add_u32 {T[4]}, {T[4]}, {sWV}\ns_mul_i32 {T[5]}, {T[4]}, 14336\ns_lshl_b32 {T[6]}, {dt}, 7\ns_add_u32 {T[5]}, {T[5]}, {T[6]}\ns_add_u32 {T[6]}, {T[5]}, 64")
            I(f"v_and_b32 v12, 15, v1\nv_mul_u32_u24 v12, 896, v12\nv_lshrrev_b32 v13, 4, v1\nv_lshl_add_u32 v12, v13, 4, v12")
            I(f"s_lshl_b32 {T[7]}, {sWV}, 10\ns_add_u32 {T[7]}, {T[7]}, {KC}")
            I(f"v_and_b32 v14, 31, v1\nv_lshlrev_b32 v14, 5, v14\nv_add_u32 v14, v14, v4\nv_add_u32 v14, {T[7]}, v14")
            I(f"v_lshlrev_b32 v13, 8, v13\nv_bfe_u32 v15, v1, 2, 2\nv_lshl_add_u32 v13, v15, 5, v13\nv_and_b32 v15, 3, v1\nv_lshl_add_u32 v13, v15, 3, v13\nv_add_u32 v13, {T[7]}, v13")
            self.L(le)
        self.wait_vm("init")
        if which == 2 and self.sent:
            I("v_max_u32 v5, v36, v40\nv_cmp_eq_u32 vcc, -1, v5")
            self.retry(lres, 4)
        for rd in range(2):
            for k in range(4):
                a = ACC[rd] + 2*k
                if which == 1 and rd == 1:
                    I(f"v_mov_b32 v{a}, v{16+2*k}\nv_mov_b32 v{a+1}, v{17+2*k}")
                elif which == 1:
                    I(f"v_lshlrev_b32 v{a}, 16, v{32+k}\nv_and_b32 v{a+1}, 0xffff0000, v{32+k}")
                else:
                    if rd == 0: I(f"v_lshlrev_b32 v{64+2*k}, 16, v{32+k}\nv_and_b32 v{65+2*k}, 0xffff0000, v{32+k}")
                    I(f"v_lshlrev_b32 v{a}, 16, v{36+4*rd+k}\nv_and_b32 v{a+1}, 0xffff0000, v{36+4*rd+k}\nv_pk_add_f32 {V(a,2)}, {V(a,2)}, {V(64+2*k,2)}")
            for k in range(8): I(f"v_mov_b32 v{ACC[rd]+8+k}, 0")
        I(f"s_mov_b32 {sSPIN}, 0")
        if not self.sent: self.gbar_in_gemm()
        self.stamp(7 if which == 1 else 10)
        for g in range(3): issue(g)

        def xwrite(acc):
            for x in (1, 2, 3):
                I(f"ds_write_b128 v{7+x}, {V(acc+8*x,4)}\nds_write_b128 v{7+x}, {V(acc+8*x+4,4)} offset:1024")
        def xread(acc):
            for x in (1, 2, 3):
                I(f"ds_read_b128 {V(acc+8*x,4)}, v11 offset:{(x-1)*2048}\nds_read_b128 {V(acc+8*x+4,4)}, v11 offset:{(x-1)*2048+1024}", tag=("x", x))
        def epi(acc, rd):
            out = []
            for x in (1, 2, 3):
                out.append(("wl", ("x", x)))
                for k in range(4): out.append(f"v_pk_add_f32 {V(acc+2*k,2)}, {V(acc+2*k,2)}, {V(acc+8*x+2*k,2)}")
            so = T[5 + rd]
            if which == 1:
                c0 = -2.0 * math.sqrt(2.0 / math.pi) / math.log(2.0)
                out.append(f"v_mov_b32 v{acc+24}, {fl(c0*0.044715)}"); out.append(f"v_mov_b32 v{acc+25}, {fl(c0)}")
                for k in range(4): out.append(f"v_pk_mul_f32 {V(acc+8+2*k,2)}, {V(acc+2*k,2)}, {V(acc+2*k,2)}")
                for k in range(4): out.append(f"v_pk_fma_f32 {V(acc+8+2*k,2)}, {V(acc+8+2*k,2)}, {V(acc+24,2)}, {V(acc+24,2)} op_sel:[0,0,1] op_sel_hi:[1,0,1]")
                for k in range(4): out.append(f"v_pk_mul_f32 {V(acc+8+2*k,2)}, {V(acc+8+2*k,2)}, {V(acc+2*k,2)}")
                for k in range(8): out.append(f"v_exp_f32 v{acc+8+k}, v{acc+8+k}")
                for k in range(4): out.append(f"v_pk_add_f32 {V(acc+8+2*k,2)}, {V(acc+8+2*k,2)}, 1.0 op_sel_hi:[1,0]")
                for k in range(8): out.append(f"v_rcp_f32 v{acc+8+k}, v{acc+8+k}")
                for k in range(4): out.append(f"v_pk_mul_f32 {V(acc+2*k,2)}, {V(acc+2*k,2)}, {V(acc+8+2*k,2)}")
                for k in range(4): out.append(f"v_cvt_pk_bf16_f32 v{acc+8+k}, v{acc+2*k}, v{acc+2*k+1}")
                out.append(f"buffer_store_dwordx4 {V(acc+8,4)}, v2, {sWS}, {so} offen sc1")
            else:
                P = acc + 28
                for k in range(4): out.append(f"v_cvt_pk_bf16_f32 v{P+k}, v{acc+2*k}, v{acc+2*k+1}")
                out.append(("fin", P, so, acc, rd))
            return out
        def run(item):
            if isinstance(item, str): I(item, tag="st")
            elif item[0] == "wl": self.wait_lg(item[1])
            else:
                _, P, so, acc, rd = item
                lo, le = self.new("Lg"), self.new("Lg")
                I(f"s_cmp_eq_u32 {sLAY}, 0\ns_cbranch_scc0 {lo}")
                I(f"buffer_store_dwordx4 {V(P,4)}, v12, {sWS}, {so} offen sc1", tag="st")
                if rd == 0:
                    for k in range(4): I(f"v_pk_mul_f32 {V(24+2*k,2)}, {V(16+2*k,2)}, {V(16+2*k,2)}")
                else:
                    for k in range(4): I(f"v_pk_fma_f32 {V(24+2*k,2)}, {V(48+2*k,2)}, {V(48+2*k,2)}, {V(24+2*k,2)}\nv_pk_add_f32 {V(16+2*k,2)}, {V(16+2*k,2)}, {V(48+2*k,2)}")
                    self.red8(16, 24, 32)
                    I(f"v_and_b32 v4, 3, v1\nv_cmp_eq_u32 {sP0}, 1, v4\nv_cmp_eq_u32 {sP1}, 2, v4\nv_cmp_eq_u32 vcc, 3, v4")
                    self.quadsum(32); self.quadsum(34)
                    I(f"v_lshlrev_b32 v4, 2, v1\nv_cndmask_b32 v32, v32, v34, {sP0}\nv_cndmask_b32 v32, v32, 1.0, {sP1}\nv_cndmask_b32 v32, v32, 0, vcc")
                    sv = self.vm; self.vm = None
                    I(f"buffer_atomic_add_f32 v32, v4, {sWS}, {T[7]} offen")
                    self.vm = sv
                I(f"s_branch {le}")
                self.L(lo)
                sv = self.vm; self.vm = None
                I(f"ds_write_b128 v14, {V(P,4)}\ns_waitcnt lgkmcnt(0)\nds_read_b64_tr_b16 {V(P,2)}, v13\nds_read_b64_tr_b16 {V(P+2,2)}, v13 offset:128\ns_waitcnt lgkmcnt(0)")
                I(f"buffer_store_dwordx4 {V(P,4)}, v12, {sOUT}, {so} offen")
                self.vm = sv
                self.L(le)

        side = []
        wtmp = {}
        def wreg(rd, ks, t):
            if which == 1: return A(8*ks + 4*t, 4)
            if ks < 16: return V(128 + 8*ks + 4*t, 4)
            return V(ACC[1-rd] + 16 + 8*(ks & 1) + 4*t, 4)
        def wfetch(rd, ks):
            b = ACC[1-rd] + 16 + 8*(ks & 1)
            for t in range(2):
                for q in range(2): I(f"ds_read_b64_tr_b16 {V(b+4*t+2*q,2)}, v{6+t} offset:{(ks-16)*2048+512*q}", tag=("w", rd, ks))
        for G in range(2*ng):
            rd, g = divmod(G, ng)
            acc = ACC[rd]
            self.wait_vm(("a", G))
            if self.sent:
                chk, stub = self.new("Lq"), self.new("Ls")
                self.L(chk)
                b = RING + 16*(G % 3)
                I(f"v_max3_u32 v13, v{b}, v{b+4}, v{b+8}" if which == 1 else f"v_max3_u32 v5, v{b}, v{b+4}, v{b+8}")
                tmp = 13 if which == 1 else 5
                I(f"v_max_u32 v{tmp}, v{tmp}, v{b+12}\nv_cmp_eq_u32 vcc, -1, v{tmp}\ns_cbranch_vccnz {stub}")
                self.L(chk + "_ok")
                self.stubs.append((stub, chk, [(RING+16*(x%3), SO[x%3]) for x in range(G, min(G+3, 2*ng))]))
            if rd == 1 and g == 1:
                I("s_waitcnt lgkmcnt(0)\ns_barrier"); xread(ACC[0]); side = epi(ACC[0], 0)
            if rd == 1 and g == 3:
                while side: run(side.pop(0))
                I("s_barrier")
            for k in range(4):
                ks = 4*g + k
                if which == 2 and ks == 15: wfetch(rd, 16)
                if which == 2 and ks >= 16:
                    self.wait_lg(("w", rd, ks))
                for t in range(2):
                    c = V(acc+16*t, 16) if (ks > 0 or t == 0) else "0"
                    I(f"v_mfma_f32_32x32x16_bf16 {V(acc+16*t,16)}, {wreg(rd, ks, t)}, {V(RING+16*(G%3)+4*k,4)}, {c}")
                    if rd == 1 and g in (1, 2) and (g, k) != (1, 0):
                        for _ in range(5):
                            if side and not (isinstance(side[0], tuple) and side[0][0] == "fin"): run(side.pop(0))
                if which == 2 and 16 <= ks < 27: wfetch(rd, ks + 1)
                if rd == 1 and g == 0 and k == 1: xwrite(ACC[0])
            if G + 3 < 2*ng: issue(G + 3)
        self.stamp(8 if which == 1 else 11)
        xwrite(ACC[1])
        I("s_waitcnt lgkmcnt(0)\ns_barrier")
        xread(ACC[1])
        for it in epi(ACC[1], 1): run(it)
        self.vm_reset()

    def gbar_in_gemm(self): pass

    def emit_stubs(self):
        for stub, chk, groups in self.stubs:
            self.L(stub)
            self.I(f"s_add_u32 {sSPIN}, {sSPIN}, 1\ns_cmp_gt_u32 {sSPIN}, {SPINMAX}\ns_cbranch_scc1 {chk}_ok\ns_sleep 1")
            for b, so in groups:
                for k in range(4): self.I(f"buffer_load_dwordx4 {V(b+4*k,4)}, v2, {sWS}, {so} offen offset:{1024*k} sc1")
            self.I(f"s_waitcnt vmcnt(0)\ns_branch {chk}")

    def build(self):
        I = self.I
        self.setup()
        self.stamp(0, False)
        self.first_loads()
        self.kidx()
        self.phase0()
        self.stamp(1, False)
        l = self.new("Lm")
        I(f"s_cmp_ge_u32 {sIDX}, 28\ns_cbranch_scc1 {l}")
        self.kgen()
        self.L(l)
        self.stamp(2, False)
        I("s_barrier")
        self.weights_upfront()
        self.stamp(3, False)
        self.L("L_layer")
        self.stamp(0)
        l = self.new("Lm")
        I(f"s_cmp_ge_u32 {sIDX}, 28\ns_cbranch_scc1 {l}")
        self.conv()
        self.L(l)
        self.stamp(4)
        if not self.sent: self.gbar()
        self.norm()
        self.stamp(6)
        if not self.sent: self.gbar()
        l = self.new("Lm")
        I(f"s_cmp_eq_u32 {sG1}, 0\ns_cbranch_scc1 {l}")
        self.gemm(1)
        self.L(l)
        self.stamp(9)
        if not self.sent: self.gbar()
        l = self.new("Lm")
        I(f"s_cmp_ge_u32 {sIDX}, 28\ns_cbranch_scc1 {l}")
        self.gemm(2)
        self.L(l)
        self.stamp(12)
        I(f"s_cmp_lg_u32 {sLAY}, 0\ns_cbranch_scc1 L_fin")
        if not self.sent: self.gbar()
        I(f"s_mov_b32 {sLAY}, 1\ns_mov_b32 {sLOFF}, {LSTRIDE}\ns_mov_b32 {sXB}, {WS_XB1}\ns_mov_b32 {sREC}, {WS_REC1}\ns_mov_b32 {sNEED}, 1\ns_mov_b32 {sEXP}, {fl(7.0)}\ns_mov_b32 {sSTB}, 24")
        l = self.new("Lm")
        I(f"s_or_b32 {T[0]}, s2, {sWV}\ns_cmp_lg_u32 {T[0]}, 0\ns_cbranch_scc1 {l}")
        I(f"v_mov_b32 v4, {sNON}\ns_mov_b64 exec, 1\nbuffer_store_dword v4, off, {sWS}, 0 sc1\ns_mov_b64 exec, -1")
        self.L(l)
        I("s_branch L_layer")
        self.L("L_fin")
        if self.stamps:
            I(f"s_lshl_b32 {T[0]}, s2, 10\ns_add_u32 {T[0]}, {T[0]}, {WS_STAMP}\nv_lshlrev_b32 v4, 2, v0\nbuffer_store_dword v3, v4, {sWS}, {T[0]} offen")
        self.L("L_end")
        I("s_endpgm")
        self.emit_stubs()
        body, nn = self.text()
        head = open("cdna_kernels/" + KNAME[:-7] + ".s.ref").read().split("; Override launch")[0]
        return (head + "; @launch grid=(256,1,1) block=(256,1,1) lds=163840\n"
                + f'.amdgcn_target "amdgcn-amd-amdhsa--gfx950"\n.text\n.globl {KNAME}\n.p2align 8\n.type {KNAME},@function\n{KNAME}:\n'
                + body + f'''.section .rodata,"a"
.p2align 6
.amdhsa_kernel {KNAME}
  .amdhsa_next_free_vgpr 512
  .amdhsa_next_free_sgpr 102
  .amdhsa_accum_offset 256
  .amdhsa_group_segment_fixed_size 0
  .amdhsa_kernarg_size 136
  .amdhsa_user_sgpr_count 2
  .amdhsa_user_sgpr_kernarg_segment_ptr 1
  .amdhsa_system_sgpr_workgroup_id_x 1
  .amdhsa_float_denorm_mode_32 3
.end_amdhsa_kernel
'''), nn

if __name__ == "__main__":
    out = sys.argv[1]
    g = Gen(sent="sent" in sys.argv, stamps="stamp" in sys.argv)
    s, nn = g.build()
    open(out, "w").write(s)
    print("instructions", sum(1 for x in g.ins if x.op), "nops added", nn)
```

```python
import sys, math, struct
sys.path.insert(0, "gen")
from asmlib import Asm

KNAME = "interleave_layers__ssm_conv_s4__mixer_token_mlp__prompt_kernel"
def fl(x): return "0x%08x" % struct.unpack("<I", struct.pack("<f", x))[0]

WS_EPOCH = 0
WS_FLAGS = 0x10000
WS_REC0, WS_REC1 = 0x100000, 0x110000
WS_XB0 = 0x200000
WS_FILL = 0x400000
WS_X1 = WS_FILL; WS_HF = WS_FILL + 0x1C0000; WS_GF = WS_FILL + 0x380000; WS_XB1 = WS_FILL + 0x508000
LSTRIDE = 0x6C8000
WS_STAMP = 0x2000000
W2L = 0; KC = 98304; KCH = 16480; SCR = 131264
U0 = SCR; NRM = SCR + 4608; KD = SCR + 4864; KDH = 1328; U1 = SCR + 7520; USTR = 7520
XCH = SCR + 8000; BR = SCR + 12288
UVROW = 1056; UVCH = 53 * UVROW
sWS, sW1, sW2, sOUT = "s[4:7]", "s[8:11]", "s[12:15]", "s[52:55]"
pX0, pARE, pAIM, pBRE, pBIM, pCRE, pCIM, pLDT, pDSK = ("s[16:17]", "s[18:19]", "s[20:21]", "s[22:23]", "s[24:25]",
                                                      "s[26:27]", "s[28:29]", "s[30:31]", "s[32:33]")
pB1, pB2 = "s[38:39]", "s[42:43]"
(sWV, sLAY, sNON, sXCD, sIDX, sTB, sD0, sG1, sFT, sDT1, sST, sDT2, sLOFF, sEXP, sXB, sREC, sNEED, sSPIN) = (
    "s50", "s51", "s56", "s57", "s58", "s59", "s60", "s61", "s62", "s63", "s64", "s65", "s66", "s67", "s68", "s69", "s70", "s71")
T = ["s72", "s73", "s74", "s75", "s76", "s77", "s78", "s79"]
sP0, sP1 = "s[80:81]", "s[82:83]"
sDK0, sDK1, sFL, sSTB = "s34", "s35", "s3", "s44"
SPINMAX = 1 << 17

def V(a, n=1): return f"v{a}" if n == 1 else f"v[{a}:{a+n-1}]"
def A(a, n=1): return f"a{a}" if n == 1 else f"a[{a}:{a+n-1}]"

class Gen(Asm):
    def __init__(self, sent=False, stamps=False):
        super().__init__()
        self.sent = sent; self.stamps = stamps
        self.stubs = []

    def stamp(self, i, layered=True):
        if not self.stamps: return
        self.I("s_memrealtime s[100:101]")
        self.I(f"s_add_u32 m0, {sSTB}, {i}" if layered else f"s_mov_b32 m0, {i}")
        self.I("s_waitcnt lgkmcnt(0)\nv_writelane_b32 v3, s100, m0")

    def gbar(self):
        I = self.I
        self.wait_vm0("lgkmcnt(0)")
        I("s_barrier")
        l1, l2, l3 = self.new("Lb"), self.new("Lb"), self.new("Lb")
        I(f"s_cmp_lg_u32 {sWV}, 0\ns_cbranch_scc1 {l1}")
        I(f"s_lshl_b32 {T[0]}, s2, 7\ns_add_u32 {T[0]}, {T[0]}, {sFL}\nv_mov_b32 v4, {sNON}\ns_mov_b64 exec, 1")
        I(f"buffer_store_dword v4, off, {sWS}, {T[0]} sc1\ns_mov_b64 exec, -1")
        self.L(l1)
        I(f"v_lshlrev_b32 v4, 7, v0\ns_mov_b32 {sSPIN}, 0")
        self.L(l2)
        I(f"s_sleep 1\nbuffer_load_dword v5, v4, {sWS}, {sFL} offen sc1\ns_waitcnt vmcnt(0)")
        I(f"v_cmp_ne_u32 vcc, {sNON}, v5\ns_add_u32 {sSPIN}, {sSPIN}, 1\ns_cmp_gt_u32 {sSPIN}, {SPINMAX}\ns_cbranch_scc1 {l3}\ns_cbranch_vccnz {l2}")
        self.L(l3)
        I(f"s_add_u32 {sFL}, {sFL}, 0x8000\ns_barrier")
        self.vm_reset()

    def setup(self):
        I = self.I
        I("s_cmp_ge_u32 s2, 256\ns_cbranch_scc1 L_end")
        I("s_load_dwordx16 s[16:31], s[0:1], 0\ns_load_dwordx16 s[32:47], s[0:1], 64\ns_load_dwordx2 s[48:49], s[0:1], 128")
        I(f"v_lshrrev_b32 v4, 6, v0\nv_and_b32 v1, 63, v0\nv_readfirstlane_b32 {sWV}, v4\nv_lshlrev_b32 v2, 4, v1\nv_mov_b32 v3, 0")
        I(f"s_and_b32 {sXCD}, s2, 7\ns_lshr_b32 {sIDX}, s2, 3" if "anti" not in sys.argv else f"s_lshr_b32 {sXCD}, s2, 5\ns_and_b32 {sIDX}, s2, 31")
        I(f"s_lshl_b32 {sTB}, {sXCD}, 5\ns_add_u32 {sTB}, {sTB}, {sIDX}")
        I(f"s_mul_i32 {sD0}, {sXCD}, 28\ns_add_u32 {sD0}, {sD0}, {sIDX}\ns_lshl_b32 {sD0}, {sD0}, 1")
        I(f"s_lshl_b32 {sST}, {sXCD}, 2\ns_and_b32 {T[0]}, {sIDX}, 3\ns_add_u32 {sST}, {sST}, {T[0]}\ns_lshr_b32 {sDT2}, {sIDX}, 2")
        I(f"s_and_b32 {T[0]}, {sXCD}, 1\ns_mul_i32 {T[1]}, {T[0]}, 25\ns_add_u32 {T[1]}, {T[1]}, {sIDX}")
        I(f"s_sub_u32 {T[0]}, 25, {T[0]}\ns_cmp_lt_u32 {sIDX}, {T[0]}\ns_cselect_b32 {sG1}, 1, 0")
        I(f"s_mul_i32 {T[2]}, {T[1]}, 37\ns_lshr_b32 {T[2]}, {T[2]}, 8\ns_mul_i32 {T[3]}, {T[2]}, 7\ns_sub_u32 {sDT1}, {T[1]}, {T[3]}")
        I(f"s_lshr_b32 {T[0]}, {sXCD}, 1\ns_mul_i32 {T[0]}, {T[0]}, 7\ns_add_u32 {sFT}, {T[0]}, {T[2]}")
        I(f"s_mov_b32 {sLAY}, 0\ns_mov_b32 {sLOFF}, 0\ns_mov_b32 {sXB}, {WS_XB0}\ns_mov_b32 {sREC}, {WS_REC0}\ns_mov_b32 {sNEED}, 2\ns_mov_b32 {sFL}, {WS_FLAGS}")
        I("s_waitcnt lgkmcnt(0)")
        I("s_mov_b32 s4, s48\ns_mov_b32 s5, s49\ns_mov_b32 s6, 0x10000000\ns_mov_b32 s7, 0x20000")
        I("s_mov_b32 s8, s36\ns_mov_b32 s9, s37\ns_mov_b32 s10, 7340032\ns_mov_b32 s11, 0x20000")
        I("s_mov_b32 s12, s40\ns_mov_b32 s13, s41\ns_mov_b32 s14, 7340032\ns_mov_b32 s15, 0x20000")
        I("s_mov_b32 s52, s44\ns_mov_b32 s53, s45\ns_mov_b32 s54, 1835008\ns_mov_b32 s55, 0x20000")
        I(f"s_mov_b32 {sSTB}, 8")

    def first_loads(self):
        I = self.I
        l = self.new("Lp")
        I(f"s_cmp_ge_u32 {sIDX}, 28\ns_cbranch_scc1 {l}")
        I(f"s_lshl_b32 {T[0]}, {sD0}, 9\ns_lshl_b32 {T[1]}, {sWV}, 8\ns_add_u32 {T[0]}, {T[0]}, {T[1]}\nv_lshl_add_u32 v4, v1, 2, {T[0]}")
        for k, p in enumerate((pARE, pAIM, pBRE, pBIM, pCRE, pCIM)):
            I(f"global_load_dword v{16+k}, v4, {p}")
        I(f"s_lshr_b32 {T[1]}, {sWV}, 1\ns_add_u32 {T[1]}, {T[1]}, {sD0}\ns_lshl_b32 {T[1]}, {T[1]}, 1\nv_mov_b32 v5, {T[1]}")
        I(f"global_load_ushort v22, v5, {pLDT}")
        I(f"s_lshl_b32 {T[1]}, {sD0}, 1\nv_mov_b32 v6, {T[1]}\nglobal_load_dword v23, v6, {pDSK}")
        self.L(l)
        self.vm_reset()
        I(f"s_mul_i32 {T[0]}, {sTB}, 7168\ns_lshl_b32 {T[1]}, {sWV}, 7\ns_add_u32 {T[0]}, {T[0]}, {T[1]}\ns_add_u32 {T[0]}, {T[0]}, 3584")
        I(f"v_lshl_add_u32 v4, v1, 1, {T[0]}")
        for j in range(8): I(f"global_load_short_d16_hi v{32+j}, v4, {pX0} offset:{896*j-3584}")
        for j in range(8): I(f"v_mov_b32 v{40+j}, 0")
        l = self.new("Lp")
        I(f"s_cmp_eq_u32 {sWV}, 3\ns_cbranch_scc1 {l}")
        sv = self.vm; self.vm = None
        for j in range(8): I(f"global_load_short_d16_hi v{40+j}, v4, {pX0} offset:{896*j-3584+512}")
        self.vm = sv
        self.L(l)
        I(f"buffer_load_dword v24, off, {sWS}, 0 sc1", tag="x0")
        I("v_mov_b32 v8, -1\nv_mov_b32 v9, -1\nv_mov_b32 v10, -1\nv_mov_b32 v11, -1\nv_lshlrev_b32 v7, 4, v0")
        I(f"s_mul_i32 {T[0]}, s2, 49152\ns_add_u32 {T[0]}, {T[0]}, {WS_FILL}")
        if self.sent:
            for k in range(12):
                I(f"buffer_store_dwordx4 v[8:11], v7, {sWS}, {T[0]} offen sc1\ns_add_u32 {T[0]}, {T[0]}, 4096")
        I("v_mov_b32 v12, 0\nv_mov_b32 v13, 0\nv_mov_b32 v14, 0\nv_mov_b32 v15, 0")
        I(f"s_lshl_b32 {T[0]}, s2, 7\ns_lshl_b32 {T[1]}, {sWV}, 5\ns_add_u32 {T[0]}, {T[0]}, {T[1]}\ns_add_u32 {T[0]}, {T[0]}, {WS_REC1}")
        I(f"s_mov_b64 exec, 3\nbuffer_store_dwordx4 v[12:15], v2, {sWS}, {T[0]} offen sc1\ns_mov_b64 exec, -1")

    def kidx(self):
        I = self.I
        I(f"s_mov_b32 {T[0]}, {KD - 0x8500}\ns_mov_b32 {T[1]}, {KD}\nv_mov_b32 v120, {KD + 1282}")
        for p in range(2):
            I(f"v_lshlrev_b32 v114, 2, v0\nv_sub_u32 v114, {2047 - 1024*p}, v114\nv_cvt_f32_i32 v115, v114")
            for e in range(0, 7, 2):
                I(f"v_subrev_f32 v116, {fl(e)}, v115\nv_subrev_f32 v117, {fl(e+1)}, v115\nv_cvt_pk_bf16_f32 v116, v116, v117")
                I(f"v_and_b32 v117, 0xffff, v116\nv_lshl_add_u32 v{100+7*p+e}, v117, 1, {T[0]}")
                if e < 6: I(f"v_lshrrev_b32 v117, 16, v116\nv_lshl_add_u32 v{100+7*p+e+1}, v117, 1, {T[0]}")
            if p == 1:
                for e in range(7):
                    I(f"v_subrev_u32 v116, {e}, v114\nv_lshl_add_u32 v117, v116, 1, {T[1]}\nv_cmp_gt_i32 vcc, 0x80, v116")
                    I(f"v_cndmask_b32 v{107+e}, v{107+e}, v117, vcc")
                    if e >= 4: I(f"v_cmp_gt_i32 vcc, 0, v116\nv_cndmask_b32 v{107+e}, v{107+e}, v120, vcc")

    def red8(self, s, q, t):
        I = self.I
        for k, src in enumerate((s, s+2, s+4, s+6, q, q+2, q+4, q+6)):
            I(f"v_add_f32_dpp v{t+k}, v{src}, v{src} row_shl:4 row_mask:0xf bank_mask:0x5")
        for k, src in enumerate((s, s+2, s+4, s+6, q, q+2, q+4, q+6)):
            I(f"v_add_f32_dpp v{t+k}, v{src+1}, v{src+1} row_shr:4 row_mask:0xf bank_mask:0xa")
        for k in range(4):
            I(f"v_add_f32_dpp v{s+k}, v{t+2*k}, v{t+2*k} row_shl:8 row_mask:0xf bank_mask:0x3")
        for k in range(4):
            I(f"v_add_f32_dpp v{s+k}, v{t+2*k+1}, v{t+2*k+1} row_shr:8 row_mask:0xf bank_mask:0xc")
        I(f"v_permlane16_swap_b32 v{s}, v{s+1}\nv_permlane16_swap_b32 v{s+2}, v{s+3}")
        I(f"v_add_f32 v{t}, v{s}, v{s+1}\nv_add_f32 v{t+2}, v{s+2}, v{s+3}")

    def quadsum(self, r):
        self.I(f"v_add_f32_dpp v{r}, v{r}, v{r} quad_perm:[1,0,3,2] row_mask:0xf bank_mask:0xf")
        self.I(f"v_add_f32_dpp v{r}, v{r}, v{r} quad_perm:[2,3,0,1] row_mask:0xf bank_mask:0xf")

    def tokstats(self, pre_barrier):
        I = self.I
        for k in range(0, 8, 2):
            I(f"v_pk_add_f32 {V(48+k,2)}, {V(32+k,2)}, {V(40+k,2)}\nv_pk_mul_f32 {V(56+k,2)}, {V(32+k,2)}, {V(32+k,2)}")
        for k in range(0, 8, 2):
            I(f"v_pk_fma_f32 {V(56+k,2)}, {V(40+k,2)}, {V(40+k,2)}, {V(56+k,2)}")
        self.red8(48, 56, 64)
        I("v_permlane32_swap_b32 v64, v66\nv_add_f32 v64, v64, v66")
        self.quadsum(64)
        I(f"s_lshl_b32 {T[0]}, {sWV}, 2\ns_add_u32 {T[0]}, {T[0]}, {NRM}\nv_lshrrev_b32 v5, 2, v1\nv_lshl_add_u32 v5, v5, 4, {T[0]}")
        I("ds_write_b32 v5, v64")
        I(f"v_and_b32 v5, 7, v1\nv_lshlrev_b32 v5, 4, v5\nv_add_u32 v5, {NRM}, v5")
        pre_barrier()
        I("s_waitcnt lgkmcnt(0)\ns_barrier\nds_read_b128 v[48:51], v5\nds_read_b128 v[52:55], v5 offset:128\ns_waitcnt lgkmcnt(0)")
        I("v_add_f32 v48, v48, v49\nv_add_f32 v52, v52, v53\nv_add_f32 v50, v50, v51\nv_add_f32 v54, v54, v55\nv_add_f32 v48, v48, v50\nv_add_f32 v52, v52, v54")

    def phase0(self):
        I = self.I
        self.wait_vm("x0")
        I(f"v_readfirstlane_b32 {sNON}, v24\ns_mov_b32 {T[2]}, 0x07060302")
        I(f"s_add_u32 {sNON}, {sNON}, 1\ns_mov_b32 {sEXP}, {sNON}")
        for k in range(8): I(f"v_perm_b32 v{72+k}, v{33+2*k}, v{32+2*k}, {T[2]}")
        I(f"s_mul_i32 {T[0]}, {sTB}, 7168\ns_lshl_b32 {T[1]}, {sWV}, 10\ns_add_u32 {T[0]}, {T[0]}, {T[1]}\ns_add_u32 {T[0]}, {T[0]}, {WS_XB0}")
        I(f"buffer_store_dwordx4 v[72:75], v2, {sWS}, {T[0]} offen sc1")
        l = self.new("Lp")
        I(f"s_cmp_eq_u32 {sWV}, 3\ns_cbranch_scc1 {l}\ns_add_u32 {T[0]}, {T[0]}, 4096")
        I(f"buffer_store_dwordx4 v[76:79], v2, {sWS}, {T[0]} offen sc1")
        self.L(l)
        self.tokstats(lambda: self.wait_vm0())
        l = self.new("Lp")
        I(f"s_cmp_lg_u32 {sWV}, 0\ns_cbranch_scc1 {l}")
        I(f"v_mov_b32 v49, v52\nv_mov_b32 v50, {sNON}\nv_mov_b32 v51, 0\ns_lshl_b32 {T[0]}, {sTB}, 7\ns_add_u32 {T[0]}, {T[0]}, {WS_REC0}")
        I(f"s_mov_b64 exec, 0xff\nbuffer_store_dwordx4 v[48:51], v2, {sWS}, {T[0]} offen sc1\ns_mov_b64 exec, -1")
        self.L(l)
        self.vm_reset()

    def w_addr(self, which):
        I = self.I
        stride, krange, tile = (3584, 512, sFT) if which == 1 else (4096, 448, sST)
        I(f"v_lshrrev_b32 v4, 3, v1\ns_mul_i32 {T[0]}, {sWV}, {krange}\nv_add_u32 v4, {T[0]}, v4\ns_mov_b32 {T[1]}, {stride}\nv_mul_lo_u32 v4, v4, {T[1]}")
        I("v_lshrrev_b32 v5, 2, v1\nv_and_b32 v5, 4, v5\nv_and_b32 v6, 7, v1\nv_xor_b32 v5, v5, v6")
        I(f"s_lshl_b32 {T[0]}, {tile}, 7\nv_lshl_add_u32 v5, v5, 4, {T[0]}\nv_add_u32 v4, v4, v5\nv_add_u32 v5, {8*stride-1024}, v4")
        self.tr_addr(6, 7)

    def tr_addr(self, d0, d1):
        I = self.I
        I(f"v_lshrrev_b32 v8, 5, v1\nv_lshlrev_b32 v8, 3, v8\nv_bfe_u32 v9, v1, 2, 2\nv_add_u32 v8, v8, v9\nv_lshlrev_b32 v8, 7, v8")
        I(f"s_mul_i32 {T[4]}, {sWV}, 24576\nv_add_u32 v8, {T[4]}, v8")
        I("v_and_b32 v9, 1, v1\nv_lshlrev_b32 v9, 4, v9\nv_bfe_u32 v10, v1, 1, 1\nv_lshl_add_u32 v9, v10, 3, v9\nv_add_u32 v8, v8, v9")
        I(f"v_bfe_u32 v9, v1, 4, 1\nv_add_u32 v9, {sWV}, v9\nv_bfe_u32 v10, v1, 3, 1\nv_lshlrev_b32 v10, 1, v10")
        I(f"v_add_u32 v11, v9, v10\nv_and_b32 v11, 3, v11\nv_lshl_add_u32 v{d0}, v11, 5, v8")
        I(f"v_xor_b32 v11, 2, v11\nv_lshl_add_u32 v{d1}, v11, 5, v8")

    def w_dma(self, which, ks, slot, tag):
        srd, stride = (sW1, 3584) if which == 1 else (sW2, 4096)
        I = self.I
        I(f"s_mul_i32 {T[6]}, {sWV}, 24576\ns_add_u32 m0, {T[6]}, {slot*2048}\ns_mov_b32 {T[7]}, {ks*16*stride}")
        I(f"buffer_load_dwordx4 v4, {srd}, {T[7]} offen lds", tag=tag)
        I(f"buffer_load_dwordx4 v5, {srd}, {T[7]} offen offset:1024 lds", tag=tag)

    def w_tr(self, dst, slot, a0=6, a1=7):
        for t in range(2):
            for q in range(2):
                self.I(f"ds_read_b64_tr_b16 {dst(4*t+2*q)}, v{(a0, a1)[t]} offset:{slot*2048+512*q}")

    def weights_upfront(self):
        I = self.I
        l1, l2 = self.new("Lw"), self.new("Lw")
        I(f"s_cmp_eq_u32 {sG1}, 0\ns_cbranch_scc1 {l1}")
        self.vm_reset()
        self.w_addr(1)
        for ks in range(12): self.w_dma(1, ks, ks, ("w", ks))
        for ks in range(32):
            self.wait_vm(("w", ks))
            self.w_tr(lambda o, ks=ks: A(8*ks+o, 2), ks % 12)
            if ks + 12 < 32:
                I("s_waitcnt lgkmcnt(0)")
                self.w_dma(1, ks + 12, ks % 12, ("w", ks + 12))
        I("s_waitcnt lgkmcnt(0)")
        self.L(l1)
        I(f"s_cmp_ge_u32 {sIDX}, 28\ns_cbranch_scc1 {l2}")
        self.vm_reset()
        self.w_addr(2)
        for ks in range(12): self.w_dma(2, ks, ks, ("w", ks))
        slot_of = {}
        for ks in range(16):
            self.wait_vm(("w", ks))
            self.w_tr(lambda o, ks=ks: V(128+8*ks+o, 2), ks % 12)
            I("s_waitcnt lgkmcnt(0)")
            if ks < 4: self.w_dma(2, ks + 12, ks, ("w", ks + 12))
        for ks in range(16, 28): self.w_dma(2, ks, ks - 16, ("w", ks))
        self.wait_vm0()
        self.L(l2)
        self.vm_reset()

    def cmul(self, d, a, b, t):
        self.I(f"v_pk_mul_f32 {V(t,2)}, {V(a,2)}, {V(b,2)} op_sel_hi:[0,1]")
        self.I(f"v_pk_fma_f32 {V(d,2)}, {V(a,2)}, {V(b,2)}, {V(t,2)} op_sel:[1,1,0] op_sel_hi:[1,0,1] neg_lo:[1,0,0]")

    def kgen(self):
        I = self.I
        LOG2E = 1.0 / math.log(2.0)
        I(f"v_lshlrev_b32 v22, 16, v22\nv_mul_f32 v22, {fl(LOG2E)}, v22\nv_exp_f32 v22, v22")
        I(f"v_readfirstlane_b32 {sDK1}, v23")
        I(f"v_cvt_pk_bf16_f32 v22, v22, v22\nv_and_b32 v22, 0xffff0000, v22")
        I(f"s_lshl_b32 {sDK0}, {sDK1}, 16\ns_and_b32 {sDK1}, {sDK1}, 0xffff0000")
        for m in range(2):
            B = 32 + 32*m
            up = (lambda d, s: I(f"v_lshlrev_b32 v{d}, 16, v{s}")) if m == 0 else (lambda d, s: I(f"v_and_b32 v{d}, 0xffff0000, v{s}"))
            up(B, 16); up(B+1, 17); up(B+24, 18); up(B+25, 19); up(B+26, 20); up(B+27, 21)
            I(f"v_mul_f32 v{B}, v22, v{B}\nv_mul_f32 v{B+1}, v22, v{B+1}\nv_mul_f32 v{B+24}, v22, v{B+24}\nv_mul_f32 v{B+25}, v22, v{B+25}")
            I(f"v_mul_f32 v{B}, {fl(LOG2E)}, v{B}\nv_mul_f32 v{B+1}, 0.15915494, v{B+1}")
            self.cmul(B+8, B+26, B+24, B+20)
        for lam, o in ((1.0, 2), (8.0, 4), (256.0, 6)):
            for m in range(2):
                B = 32 + 32*m
                I(f"v_mul_f32 v{B+24}, {fl(lam)}, v{B}\nv_mul_f32 v{B+25}, {fl(lam)}, v{B+1}\nv_exp_f32 v{B+24}, v{B+24}\nv_fract_f32 v{B+25}, v{B+25}")
                I(f"v_cos_f32 v{B+o}, v{B+25}\nv_sin_f32 v{B+o+1}, v{B+25}")
            for m in range(2):
                B = 32 + 32*m
                I(f"v_pk_mul_f32 {V(B+o,2)}, {V(B+o,2)}, {V(B+24,2)} op_sel_hi:[1,0]")
        I(f"s_lshr_b32 {T[0]}, {sWV}, 1\ns_mul_i32 {T[0]}, {T[0]}, {UVCH}\ns_and_b32 {T[1]}, {sWV}, 1\ns_lshl_b32 {T[1]}, {T[1]}, 9\ns_add_u32 {T[0]}, {T[0]}, {T[1]}")
        I(f"v_lshl_add_u32 v4, v1, 3, {T[0]}")
        pk = [0]
        def put(row, r0, neg):
            p = 24 + 2*(pk[0] % 4); pk[0] += 1
            n = "-" if neg else ""
            I(f"v_cvt_pk_bf16_f32 v{p}, v{32+r0}, {n}v{33+r0}\nv_cvt_pk_bf16_f32 v{p+1}, v{64+r0}, {n}v{65+r0}")
            I(f"ds_write_b64 v4, {V(p,2)} offset:{row*UVROW}")
        def mul2(d, a, b, t):
            for m in range(2):
                B = 32 + 32*m
                I(f"v_pk_mul_f32 {V(B+t,2)}, {V(B+a,2)}, {V(B+b,2)} op_sel_hi:[0,1]")
            for m in range(2):
                B = 32 + 32*m
                I(f"v_pk_fma_f32 {V(B+d,2)}, {V(B+a,2)}, {V(B+b,2)}, {V(B+t,2)} op_sel:[1,1,0] op_sel_hi:[1,0,1] neg_lo:[1,0,0]")
        us = [(1, 16, 8, 2), (2, 10, 16, 2), (3, 16, 10, 2), (4, 12, 16, 2), (5, 16, 12, 2), (6, 14, 16, 2), (7, 16, 14, 2),
              (8, 8, 8, 6), (9, 10, 10, 6), (10, 12, 12, 6), (11, 14, 14, 6), (12, 8, 8, 6), (13, 12, 12, 6), (14, 8, 8, 6), (15, 12, 12, 6),
              (16, 8, 8, 6), (17, 8, 8, 6), (18, 8, 8, 6), (19, 8, 8, 6), (20, 8, 8, 6)]
        I("v_mov_b32 v96, 0x3f80\nv_mov_b32 v97, 0x3f80")
        I(f"ds_write_b64 v4, v[96:97] offset:{21*UVROW}")
        put(0, 8, True); put(22, 4, False)
        for j in range(2, 32):
            mul2(18, 4 if j == 2 else 18, 4, 22)
            if us:
                row, d, s, f = us.pop(0)
                mul2(d, s, f, 20)
                put(21 + j, 18, False); put(row, d, True)
            else:
                put(21 + j, 18, False)
        I(f"s_lshr_b32 {T[2]}, {sWV}, 1\ns_mul_i32 {T[3]}, {T[2]}, {KDH}\ns_add_u32 {T[3]}, {T[3]}, {KD}")
        I(f"v_mov_b32 v5, 0\nv_mov_b32 v6, {T[3]}\nds_write_b16 v6, v5 offset:1282")
        I(f"s_mul_i32 {T[0]}, {T[2]}, {UVCH}\nv_and_b32 v7, 15, v1\nv_lshrrev_b32 v8, 4, v1\nv_lshl_add_u32 v9, v8, 4, {T[0]}")
        I(f"s_mov_b32 {T[1]}, {UVROW}\nv_mul_lo_u32 v10, v7, {T[1]}\nv_add_u32 v10, v10, v9")
        I(f"v_min_u32 v11, 4, v7\nv_add_u32 v11, 16, v11\nv_mul_lo_u32 v11, v11, {T[1]}\nv_add_u32 v11, v11, v9")
        I(f"s_and_b32 {T[4]}, {sWV}, 1\ns_lshl_b32 {T[5]}, {T[4]}, 4\ns_add_u32 {T[6]}, {T[5]}, 21\ns_mul_i32 {T[6]}, {T[6]}, {UVROW}\nv_add_u32 v12, {T[6]}, v10")
        I("s_waitcnt lgkmcnt(0)\ns_barrier")
        def rd(s):
            b = 32 + 12*(s % 4)
            I(f"ds_read_b128 {V(b,4)}, v10 offset:{64*s}\nds_read_b128 {V(b+4,4)}, v12 offset:{64*s}\nds_read_b128 {V(b+8,4)}, v11 offset:{64*s}")
        for s in range(3): rd(s)
        for s in range(16):
            if s + 3 < 16: rd(s + 3)
            I(f"s_waitcnt lgkmcnt({3*min(3, 15-s)})")
            b = 32 + 12*(s % 4)
            c0 = "0" if s == 0 else "v[16:19]"; c1 = "0" if s == 0 else "v[20:23]"
            I(f"v_mfma_f32_16x16x32_bf16 v[16:19], {V(b,4)}, {V(b+4,4)}, {c0}\nv_mfma_f32_16x16x32_bf16 v[20:23], {V(b+8,4)}, {V(b+4,4)}, {c1}")
        I(f"v_add_u32 v7, {T[5]}, v7")
        I(f"v_lshlrev_b32 v9, 3, v7\nv_lshl_add_u32 v9, v8, 2, v9\nv_lshlrev_b32 v10, 2, v7\nv_add_u32 v10, 256, v10\nv_lshlrev_b32 v11, 1, v7\nv_add_u32 v11, 384, v11")
        I("v_cmp_eq_u32 vcc, 2, v8\nv_cndmask_b32 v9, v9, v10, vcc\nv_mov_b32 v10, 2\nv_cmp_eq_u32 vcc, 3, v8\nv_cndmask_b32 v9, v9, v11, vcc\nv_cndmask_b32 v10, v10, 64, vcc")
        I(f"v_add_u32 v10, v9, v10\nv_lshl_add_u32 v9, v9, 1, {T[3]}\nv_lshl_add_u32 v10, v10, 1, {T[3]}")
        I(f"v_add_u32 v11, 512, v7\nv_mov_b32 v12, 640\nv_cmp_eq_u32 vcc, 16, v1\nv_cndmask_b32 v11, v11, v12, vcc\nv_lshl_add_u32 v11, v11, 1, {T[3]}")
        I("v_cvt_pk_bf16_f32 v16, v16, v17\nv_cvt_pk_bf16_f32 v17, v18, v19\nv_cvt_pk_bf16_f32 v20, v20, v21\nv_cvt_pk_bf16_f32 v21, v22, v23")
        I("ds_write_b32 v9, v16\nds_write_b32 v10, v17")
        I(f"s_lshr_b32 exec_lo, 0x1ffff, {T[4]}\ns_mov_b32 exec_hi, 0\nds_write_b16 v11, v20")
        I("s_mov_b32 exec_lo, 0xffff\nds_write_b16_d16_hi v11, v20 offset:64\nds_write_b16 v11, v21 offset:128\nds_write_b16_d16_hi v11, v21 offset:192\ns_mov_b64 exec, -1")
        I("s_waitcnt lgkmcnt(0)\ns_barrier")
        I(f"v_lshlrev_b32 v4, 5, v0\nv_add_u32 v4, {KC}, v4")
        def gat(p, ch):
            g = 32 + 8*(2*p+ch)
            for e in range(7): I(f"ds_read_u16 v{g+e}, v{100+7*p+e} offset:{ch*KDH}", tag=("g", p, ch))
        gat(0, 0); gat(0, 1)
        I(f"v_mov_b32 v12, 0\nv_mov_b32 v13, 0\nv_mov_b32 v14, 0\nv_mov_b32 v15, 0\nv_add_u32 v5, {KC+512*32}, v2\nv_add_u32 v6, {U0}, v2")
        for p in range(2):
            for ch in range(2):
                g = 32 + 8*(2*p+ch); o = 64 + 8*(2*p+ch)
                self.wait_lg(("g", p, ch))
                if p == 0: gat(1, ch)
                for k, e in enumerate((0, 2, 1, 3, 2, 4, 3, 5)): I(f"v_lshl_or_b32 v{o+k}, v{g+e+1}, 16, v{g+e}")
                I(f"ds_write_b128 v4, {V(o,4)} offset:{ch*KCH+8192*p}\nds_write_b128 v4, {V(o+4,4)} offset:{ch*KCH+8192*p+16}")
        l = self.new("Lk")
        I(f"s_cmp_lg_u32 {sWV}, 0\ns_cbranch_scc1 {l}")
        I(f"s_mov_b64 exec, 0x3f\nds_write_b128 v5, v[12:15]\nds_write_b128 v5, v[12:15] offset:{KCH}")
        I(f"s_mov_b64 exec, 0x3fffffff\nds_write_b128 v6, v[12:15]\nds_write_b128 v6, v[12:15] offset:{USTR}\ns_mov_b64 exec, -1")
        self.L(l)
        I("s_waitcnt lgkmcnt(0)")

    def retry(self, lab, sleep=1):
        l = self.new("Lr")
        self.I(f"s_cbranch_vccz {l}\ns_add_u32 {sSPIN}, {sSPIN}, 1\ns_cmp_gt_u32 {sSPIN}, {SPINMAX}\ns_cbranch_scc1 {l}")
        self.I(f"s_sleep {sleep}\ns_branch {lab}")
        self.L(l)

    def conv(self):
        I = self.I
        I("s_barrier")
        I(f"s_mov_b32 {T[0]}, 7168\nv_mul_lo_u32 v4, v0, {T[0]}\ns_lshl_b32 {T[0]}, {sD0}, 4\nv_add_u32 v4, {T[0]}, v4")
        I(f"s_lshl_b32 {T[0]}, {sWV}, 13\ns_add_u32 {T[0]}, {T[0]}, {sREC}\ns_add_u32 {T[1]}, {T[0]}, 4096\ns_mov_b32 {sSPIN}, 0")
        lp = self.new("Lc")
        self.L(lp)
        self.vm_reset()
        for i in range(8): I(f"buffer_load_dwordx3 {V(48+4*i,3)}, v2, {sWS}, {T[i>>2]} offen offset:{1024*(i&3)} sc1")
        I(f"buffer_load_dwordx4 v[80:83], v4, {sWS}, {sXB} offen sc1\nbuffer_load_dwordx4 v[84:87], v4, {sWS}, {sXB} offen offset:16 sc1")
        I(f"s_lshl_b32 {T[2]}, {sWV}, 12\ns_add_u32 {T[2]}, {T[2]}, {BR}")
        I(f"v_lshrrev_b32 v5, 1, v1\nv_lshrrev_b32 v6, 5, v1\nv_xor_b32 v5, v5, v6\nv_lshlrev_b32 v5, 4, v5\nv_and_b32 v6, 1, v1\nv_lshl_add_u32 v5, v6, 3, v5")
        I(f"v_add_u32 v5, {T[2]}, v5\nv_xor_b32 v6, 32, v5")
        I(f"v_bfe_u32 v7, v1, 2, 2\nv_lshlrev_b32 v7, 4, v7\nv_lshl_add_u32 v7, v1, 6, v7\nv_add_u32 v7, {T[2]}, v7")
        I("v_xor_b32 v8, 16, v7\nv_xor_b32 v9, 32, v7\nv_xor_b32 v10, 48, v7")
        I(f"v_lshl_add_u32 v11, v1, 5, {T[2]}\nv_lshlrev_b32 v14, 4, v0\nv_add_u32 v14, {U0+480}, v14")
        I(f"v_mov_b32 v12, {fl(1/448)}\nv_mov_b32 v13, {fl(1/448)}\ns_mov_b32 s80, 0\ns_mov_b32 s81, {fl(1e-5)}")
        self.wait_vm0()
        I(f"v_xor_b32 v15, {sEXP}, v50")
        for i in range(1, 8): I(f"v_bitop3_b32 v15, v15, v{50+4*i}, {sEXP} bitop3:0xf6")
        I(f"v_max_u32 v51, v80, v84\nv_cmp_eq_u32 {sP1}, -1, v51\nv_cmp_ne_u32 vcc, 0, v15\ns_or_b64 vcc, vcc, {sP1}")
        self.retry(lp)
        I(f"s_sub_u32 {sNEED}, {sNEED}, 1\ns_cmp_gt_i32 {sNEED}, 0\ns_cbranch_scc1 {lp}")
        self.stamp(1)
        for i in range(8):
            R = 48 + 4*i
            I(f"v_pk_fma_f32 {V(R,2)}, {V(R,2)}, v[12:13], {sP0}")
        for i in range(8): I(f"v_fma_f32 v{49+4*i}, -v{48+4*i}, v{48+4*i}, v{49+4*i}")
        for i in range(8): I(f"v_max_f32 v{49+4*i}, s81, v{49+4*i}")
        for i in range(8): I(f"v_rsq_f32 v{50+4*i}, v{49+4*i}")
        for i in range(8):
            I(f"v_mul_f32 v{51+4*i}, -v{48+4*i}, v{50+4*i}")
            I(f"ds_write_b64 v{5+(i&1)}, {V(50+4*i,2)} offset:{512*i}")
        for j in range(8):
            for ch in range(2):
                src = 80 + 4*ch + (j >> 1)
                I(f"v_lshlrev_b32 v{88+2*j+ch}, 16, v{src}" if j % 2 == 0 else f"v_and_b32 v{88+2*j+ch}, 0xffff0000, v{src}")
        I("s_waitcnt lgkmcnt(0)")
        for k in range(4): I(f"ds_read_b128 {V(48+4*k,4)}, v{7+k}", tag=("st", k))
        for j in range(8):
            if j % 2 == 0: self.wait_lg(("st", j >> 1))
            I(f"v_pk_fma_f32 {V(64+2*j,2)}, {V(88+2*j,2)}, {V(48+2*j,2)}, {V(48+2*j,2)} op_sel:[0,0,1] op_sel_hi:[1,0,1]")
        for ch in range(2):
            for k in range(4): I(f"v_cvt_pk_bf16_f32 v{104+4*ch+k}, v{64+4*k+ch}, v{66+4*k+ch}")
            I(f"ds_write_b128 v14, {V(104+4*ch,4)} offset:{ch*USTR}")
        for ch in range(2):
            for j in range(8): I(f"v_fma_f32 v{112+8*ch+j}, v{64+2*j+ch}, {(sDK0, sDK1)[ch]}, v{88+2*j+ch}")
            I(f"ds_write_b128 v11, {V(112+8*ch,4)} offset:{2048*ch}\nds_write_b128 v11, {V(116+8*ch,4)} offset:{2048*ch+16}")
        I(f"s_lshr_b32 {T[0]}, {sWV}, 1\ns_and_b32 {T[1]}, {sWV}, 1\nv_and_b32 v9, 15, v1\nv_lshrrev_b32 v10, 4, v1")
        I(f"s_mul_i32 {T[2]}, {T[0]}, {USTR}\ns_lshl_b32 {T[3]}, {T[1]}, 8\ns_sub_u32 {T[2]}, {T[2]}, {T[3]}\ns_add_u32 {T[2]}, {T[2]}, {U0}")
        I(f"v_lshlrev_b32 v4, 5, v9\nv_lshl_add_u32 v4, v10, 4, v4\nv_add_u32 v4, {T[2]}, v4")
        I(f"s_mul_i32 {T[2]}, {T[0]}, {KCH}\ns_lshl_b32 {T[3]}, {T[1]}, 10\ns_sub_u32 {T[2]}, {T[2]}, {T[3]}\ns_add_u32 {T[2]}, {T[2]}, {KC + 3*32 + 3*8}")
        I(f"v_lshlrev_b32 v5, 6, v10\nv_lshrrev_b32 v6, 2, v9\nv_lshlrev_b32 v6, 5, v6\nv_sub_u32 v5, v5, v6\nv_and_b32 v6, 3, v1\nv_lshlrev_b32 v6, 3, v6\nv_sub_u32 v5, v5, v6\nv_add_u32 v5, {T[2]}, v5")
        I(f"s_lshl_b32 {T[2]}, {T[0]}, 11\ns_lshl_b32 {T[3]}, {T[1]}, 13\ns_add_u32 {T[2]}, {T[2]}, {BR}\ns_add_u32 {T[4]}, {T[2]}, {T[3]}\ns_xor_b32 {T[3]}, {T[3]}, 8192\ns_add_u32 {T[5]}, {T[2]}, {T[3]}")
        I(f"v_lshlrev_b32 v7, 6, v9\nv_lshl_add_u32 v7, v10, 4, v7\nv_add_u32 v6, {T[4]}, v7\nv_add_u32 v7, {T[5]}, v7")
        I(f"v_lshlrev_b32 v8, 5, v9\nv_and_b32 v9, 1, v10\nv_lshl_add_u32 v8, v9, 9, v8\nv_lshrrev_b32 v10, 1, v10\nv_lshl_add_u32 v8, v10, 4, v8")
        I(f"s_add_u32 {T[5]}, {sD0}, {T[0]}\ns_lshl_b32 {T[5]}, {T[5]}, 12\ns_lshl_b32 {T[3]}, {T[1]}, 11\ns_add_u32 {T[5]}, {T[5]}, {T[3]}\ns_add_u32 {T[5]}, {T[5]}, {sLOFF}\ns_add_u32 {T[5]}, {T[5]}, {WS_X1}")
        IMM = (0, 1024, 4096, 5120)
        I("s_waitcnt lgkmcnt(0)\ns_barrier")
        self.stamp(2)
        la, lb = self.new("Lc"), self.new("Lc")
        I(f"s_cmp_eq_u32 {T[1]}, 0\ns_cbranch_scc0 {la}")
        for k in range(4): I(f"ds_read_b128 {V(16+4*k,4)}, v6 offset:{IMM[k]}")
        for k in range(16): I(f"v_mov_b32 v{32+k}, 0")
        I(f"s_branch {lb}")
        self.L(la)
        self.lg = self.lg[:-4]
        for k in range(4): I(f"ds_read_b128 {V(32+4*k,4)}, v6 offset:{IMM[k]}", tag="init")
        for k in range(16): I(f"v_mov_b32 v{16+k}, 0")
        self.L(lb)
        order = (0, 7, 1, 6, 2, 5, 3, 4)
        steps = [(sg, m) for sg in range(4) for m in order]
        kslot = lambda n: 100 + 4*(n % 3)
        def kload(n):
            sg, m = steps[n]; off = (63 - 8*m - sg) * 256
            return [(f"ds_read_b64 {V(kslot(n),2)}, v5 offset:{off}", ("k", n)), (f"ds_read_b64 {V(kslot(n)+2,2)}, v5 offset:{off+32}", ("k", n))]
        uslot = {(0, c): c for c in range(8)}
        free = [8, 9, 10, 11, 12]
        def uload(sg, c): return (f"ds_read_b128 {V(48+4*uslot[(sg,c)],4)}, v4 offset:{512*c+64*(7-sg)}", ("u", sg, c))
        for x in kload(0) + [uload(0, c) for c in range(8)] + kload(1): I(*x)
        self.wait_lg("init")
        q = []
        for n, (sg, m) in enumerate(steps):
            pos = n % 8
            if n + 2 < len(steps): q = kload(n + 2) + q
            if sg < 3:
                if pos == 0:
                    for c in range(5):
                        uslot[(sg+1, c)] = free.pop(0); q.append(uload(sg+1, c))
                if pos in (1, 3, 5):
                    c = 5 + pos // 2; uslot[(sg+1, c)] = uslot[(sg, 7 - pos // 2)]; q.append(uload(sg+1, c))
                if pos == 7: free = [uslot[(sg, c)] for c in range(5)]
            self.wait_lg(("k", n))
            for j in range(m, 8):
                self.wait_lg(("u", sg, j - m))
                I(f"v_mfma_f32_16x16x32_bf16 {V(16+4*j,4)}, {V(kslot(n),4)}, {V(48+4*uslot[(sg,j-m)],4)}, {V(16+4*j,4)}")
                if q: I(*q.pop(0))
        assert not q
        self.stamp(3)
        la, lb = self.new("Lc"), self.new("Lc")
        I(f"s_cmp_eq_u32 {T[1]}, 0\ns_cbranch_scc0 {la}")
        for own, oth, nxt in ((16, 32, lb), (32, 16, None)):
            for k in range(4): I(f"ds_write_b128 v6, {V(oth+4*k,4)} offset:{IMM[k]}")
            I("s_waitcnt lgkmcnt(0)\ns_barrier")
            for k in range(4): I(f"ds_read_b128 {V(48+4*k,4)}, v7 offset:{IMM[k]}", tag=("p", k))
            for k in range(4):
                self.wait_lg(("p", k))
                I(f"v_pk_add_f32 {V(48+4*k,2)}, {V(48+4*k,2)}, {V(own+4*k,2)}\nv_pk_add_f32 {V(50+4*k,2)}, {V(50+4*k,2)}, {V(own+4*k+2,2)}")
            if nxt:
                I(f"s_branch {nxt}"); self.L(la)
        self.L(lb)
        for k in range(8): I(f"v_cvt_pk_bf16_f32 v{64+k}, v{48+2*k}, v{49+2*k}")
        for k in (0, 4):
            I(f"v_permlane16_swap_b32 v{64+k}, v{66+k}\nv_permlane16_swap_b32 v{65+k}, v{67+k}")
        I(f"buffer_store_dwordx4 v[64:67], v8, {sWS}, {T[5]} offen sc1\nbuffer_store_dwordx4 v[68:71], v8, {sWS}, {T[5]} offen offset:1024 sc1")

    def norm(self):
        I = self.I
        I("s_barrier")
        I(f"v_lshlrev_b32 v4, 12, v1\ns_lshl_b32 {T[0]}, {sWV}, 18\ns_add_u32 {T[0]}, {T[0]}, {sLOFF}\ns_lshl_b32 {T[1]}, {sTB}, 4")
        I(f"s_add_u32 {T[1]}, {T[1]}, {T[0]}\ns_add_u32 {T[1]}, {T[1]}, {WS_X1}\ns_add_u32 {T[2]}, {T[1]}, 0x100000\ns_mov_b32 {sSPIN}, 0")
        I(f"s_lshl_b32 {T[3]}, {sTB}, 9\ns_add_u32 {T[3]}, {T[3]}, {T[0]}\ns_add_u32 {T[3]}, {T[3]}, {WS_HF}\ns_add_u32 {T[4]}, {T[3]}, 0x100000")
        I("v_mov_b32 v76, 0\nv_mov_b32 v77, 0\nv_mov_b32 v78, 0\nv_mov_b32 v79, 0")
        I("v_lshrrev_b32 v6, 5, v1\nv_lshlrev_b32 v6, 17, v6\nv_and_b32 v7, 31, v1\nv_lshl_add_u32 v6, v7, 4, v6")
        lp, l = self.new("Ln"), self.new("Ln")
        self.L(lp)
        I(f"buffer_load_dwordx4 v[72:75], v4, {sWS}, {T[1]} offen sc1\ns_cmp_eq_u32 {sWV}, 3\ns_cbranch_scc1 {l}")
        I(f"buffer_load_dwordx4 v[76:79], v4, {sWS}, {T[2]} offen sc1")
        self.L(l)
        self.wait_vm0()
        if self.sent:
            I("v_max_u32 v5, v72, v76\nv_cmp_eq_u32 vcc, -1, v5")
            self.retry(lp, 2)
        self.stamp(5)
        for k in range(8):
            I(f"v_lshlrev_b32 v{32+2*k}, 16, v{72+k}\nv_and_b32 v{33+2*k}, 0xffff0000, v{72+k}")
        self.tokstats(lambda: None)
        I(f"v_mul_f32 v48, {fl(1/448)}, v48\nv_mul_f32 v52, {fl(1/448)}, v52\nv_fma_f32 v52, -v48, v48, v52\nv_max_f32 v52, 0, v52")
        I(f"v_add_f32 v49, {fl(1e-5)}, v52\nv_rsq_f32 v49, v49\nv_sub_f32 v48, 0, v48\nv_mul_f32 v50, v49, v49\nv_mov_b32 v51, {fl(1e-5)}\nv_fma_f32 v50, v52, v50, v51")
        I("v_rsq_f32 v50, v50\nv_mul_f32 v49, v49, v50")
        for j in range(8): I(f"v_readlane_b32 s{84+j}, v48, {j}")
        for j in range(8): I(f"v_readlane_b32 s{92+j}, v49, {j}")
        for k in range(8): I(f"v_pk_add_f32 {V(32+2*k,2)}, {V(32+2*k,2)}, s[{84+(2*k&7)}:{85+(2*k&7)}]")
        for k in range(8): I(f"v_pk_mul_f32 {V(32+2*k,2)}, {V(32+2*k,2)}, s[{92+(2*k&7)}:{93+(2*k&7)}]")
        for k in range(8): I(f"v_cvt_pk_bf16_f32 v{72+k}, v{32+2*k}, v{33+2*k}")
        l = self.new("Ln")
        I(f"buffer_store_dwordx4 v[72:75], v6, {sWS}, {T[3]} offen sc1\ns_cmp_eq_u32 {sWV}, 3\ns_cbranch_scc1 {l}")
        I(f"buffer_store_dwordx4 v[76:79], v6, {sWS}, {T[4]} offen sc1")
        self.L(l)
        self.vm_reset()

    def gemm(self, which):
        I = self.I
        nks, NKS, buf, dt = (32, 128, WS_HF, sDT1) if which == 1 else (28, 112, WS_GF, sDT2)
        ng = nks // 4
        ACC = (16, 48); RING = 80
        self.vm_reset()
        I(f"s_barrier\ns_mov_b32 {sSPIN}, 0")
        lres = self.new("Lg")
        self.L(lres)
        I(f"v_lshrrev_b32 v4, 5, v1\nv_lshlrev_b32 v4, 4, v4\ns_lshl_b32 {T[0]}, {sFT if which == 1 else sST}, 7\ns_lshl_b32 {T[1]}, {sWV}, 5\ns_add_u32 {T[0]}, {T[0]}, {T[1]}")
        I(f"v_add_u32 v5, {T[0]}, v4\nglobal_load_dwordx4 v[32:35], v5, {pB1 if which == 1 else pB2}", tag="init")
        if which == 2:
            I(f"v_and_b32 v6, 31, v1\nv_lshl_add_u32 v5, v6, 12, v5\ns_lshl_b32 {T[1]}, {dt}, 18\ns_add_u32 {T[1]}, {T[1]}, {sLOFF}\ns_add_u32 {T[1]}, {T[1]}, {WS_X1}\ns_add_u32 {T[2]}, {T[1]}, 0x20000")
            I(f"buffer_load_dwordx4 v[36:39], v5, {sWS}, {T[1]} offen sc1\nbuffer_load_dwordx4 v[40:43], v5, {sWS}, {T[2]} offen sc1", tag="init")
        I(f"s_mul_i32 {T[0]}, {dt}, {2*NKS*1024}\ns_mul_i32 {T[1]}, {sWV}, {nks*1024}\ns_add_u32 {T[0]}, {T[0]}, {T[1]}\ns_add_u32 {T[0]}, {T[0]}, {sLOFF}\ns_add_u32 {T[0]}, {T[0]}, {buf}")
        goff = lambda g: (g * 4096 if g < ng else NKS*1024 + (g - ng) * 4096)
        SO = (T[1], T[2], T[3])
        def loads(g, tag=True):
            for k in range(4): I(f"buffer_load_dwordx4 {V(RING+16*(g%3)+4*k,4)}, v2, {sWS}, {SO[g%3]} offen offset:{1024*k} sc1", tag=("a", g))
        def issue(g):
            I(f"s_add_u32 {SO[g%3]}, {T[0]}, {goff(g)}"); loads(g)
        if which == 2: self.tr_addr(6, 7)
        for x in (1, 2, 3):
            I(f"s_add_u32 {T[4]}, {sWV}, {x}\ns_and_b32 {T[4]}, {T[4]}, 3\ns_mul_i32 {T[4]}, {T[4]}, 6144\ns_add_u32 {T[4]}, {T[4]}, {XCH + (x-1)*2048}\nv_add_u32 v{7+x}, {T[4]}, v2")
        I(f"s_mul_i32 {T[4]}, {sWV}, 6144\ns_add_u32 {T[4]}, {T[4]}, {XCH}\nv_add_u32 v11, {T[4]}, v2")
        if which == 1:
            I(f"s_mul_i32 {T[5]}, {dt}, {224*1024}\ns_lshl_b32 {T[4]}, {sFT}, 2\ns_add_u32 {T[4]}, {T[4]}, {sWV}\ns_lshl_b32 {T[4]}, {T[4]}, 10\ns_add_u32 {T[5]}, {T[5]}, {T[4]}")
            I(f"s_add_u32 {T[5]}, {T[5]}, {sLOFF}\ns_add_u32 {T[5]}, {T[5]}, {WS_GF}\ns_add_u32 {T[6]}, {T[5]}, {112*1024}")
        else:
            lo, le = self.new("Lg"), self.new("Lg")
            I(f"s_cmp_eq_u32 {sLAY}, 0\ns_cbranch_scc0 {lo}")
            I(f"s_lshl_b32 {T[4]}, {sST}, 2\ns_add_u32 {T[4]}, {T[4]}, {sWV}\ns_mul_i32 {T[5]}, {T[4]}, 14336\ns_lshl_b32 {T[6]}, {dt}, 10\ns_add_u32 {T[5]}, {T[5]}, {T[6]}\ns_add_u32 {T[5]}, {T[5]}, {WS_XB1}\ns_add_u32 {T[6]}, {T[5]}, 512")
            I(f"v_lshrrev_b32 v12, 5, v1\nv_mul_u32_u24 v12, 7168, v12\nv_and_b32 v13, 31, v1\nv_lshl_add_u32 v12, v13, 4, v12")
            I(f"s_lshl_b32 {T[7]}, {T[4]}, 8\ns_add_u32 {T[7]}, {T[7]}, {WS_REC1}\ns_branch {le}")
            self.L(lo)
            I(f"s_lshl_b32 {T[4]}, {sST}, 2\ns_add_u32 {T[4]}, {T[4]}, {sWV}\ns_mul_i32 {T[5]}, {T[4]}, 14336\ns_lshl_b32 {T[6]}, {dt}, 7\ns_add_u32 {T[5]}, {T[5]}, {T[6]}\ns_add_u32 {T[6]}, {T[5]}, 64")
            I(f"v_and_b32 v12, 15, v1\nv_mul_u32_u24 v12, 896, v12\nv_lshrrev_b32 v13, 4, v1\nv_lshl_add_u32 v12, v13, 4, v12")
            I(f"s_lshl_b32 {T[7]}, {sWV}, 10\ns_add_u32 {T[7]}, {T[7]}, {KC}")
            I(f"v_and_b32 v14, 31, v1\nv_lshlrev_b32 v14, 5, v14\nv_add_u32 v14, v14, v4\nv_add_u32 v14, {T[7]}, v14")
            I(f"v_lshlrev_b32 v13, 8, v13\nv_bfe_u32 v15, v1, 2, 2\nv_lshl_add_u32 v13, v15, 5, v13\nv_and_b32 v15, 3, v1\nv_lshl_add_u32 v13, v15, 3, v13\nv_add_u32 v13, {T[7]}, v13")
            self.L(le)
        self.wait_vm("init")
        if which == 2 and self.sent:
            I("v_max_u32 v5, v36, v40\nv_cmp_eq_u32 vcc, -1, v5")
            self.retry(lres, 4)
        for rd in range(2):
            for k in range(4):
                a = ACC[rd] + 2*k
                if which == 1 and rd == 1:
                    I(f"v_mov_b32 v{a}, v{16+2*k}\nv_mov_b32 v{a+1}, v{17+2*k}")
                elif which == 1:
                    I(f"v_lshlrev_b32 v{a}, 16, v{32+k}\nv_and_b32 v{a+1}, 0xffff0000, v{32+k}")
                else:
                    if rd == 0: I(f"v_lshlrev_b32 v{64+2*k}, 16, v{32+k}\nv_and_b32 v{65+2*k}, 0xffff0000, v{32+k}")
                    I(f"v_lshlrev_b32 v{a}, 16, v{36+4*rd+k}\nv_and_b32 v{a+1}, 0xffff0000, v{36+4*rd+k}\nv_pk_add_f32 {V(a,2)}, {V(a,2)}, {V(64+2*k,2)}")
            for k in range(8): I(f"v_mov_b32 v{ACC[rd]+8+k}, 0")
        I(f"s_mov_b32 {sSPIN}, 0")
        if not self.sent: self.gbar_in_gemm()
        self.stamp(7 if which == 1 else 10)
        for g in range(3): issue(g)

        def xwrite(acc):
            for x in (1, 2, 3):
                I(f"ds_write_b128 v{7+x}, {V(acc+8*x,4)}\nds_write_b128 v{7+x}, {V(acc+8*x+4,4)} offset:1024")
        def xread(acc):
            for x in (1, 2, 3):
                I(f"ds_read_b128 {V(acc+8*x,4)}, v11 offset:{(x-1)*2048}\nds_read_b128 {V(acc+8*x+4,4)}, v11 offset:{(x-1)*2048+1024}", tag=("x", x))
        def epi(acc, rd):
            out = []
            for x in (1, 2, 3):
                out.append(("wl", ("x", x)))
                for k in range(4): out.append(f"v_pk_add_f32 {V(acc+2*k,2)}, {V(acc+2*k,2)}, {V(acc+8*x+2*k,2)}")
            so = T[5 + rd]
            if which == 1:
                c0 = -2.0 * math.sqrt(2.0 / math.pi) / math.log(2.0)
                out.append(f"v_mov_b32 v{acc+24}, {fl(c0*0.044715)}"); out.append(f"v_mov_b32 v{acc+25}, {fl(c0)}")
                for k in range(4): out.append(f"v_pk_mul_f32 {V(acc+8+2*k,2)}, {V(acc+2*k,2)}, {V(acc+2*k,2)}")
                for k in range(4): out.append(f"v_pk_fma_f32 {V(acc+8+2*k,2)}, {V(acc+8+2*k,2)}, {V(acc+24,2)}, {V(acc+24,2)} op_sel:[0,0,1] op_sel_hi:[1,0,1]")
                for k in range(4): out.append(f"v_pk_mul_f32 {V(acc+8+2*k,2)}, {V(acc+8+2*k,2)}, {V(acc+2*k,2)}")
                for k in range(8): out.append(f"v_exp_f32 v{acc+8+k}, v{acc+8+k}")
                for k in range(4): out.append(f"v_pk_add_f32 {V(acc+8+2*k,2)}, {V(acc+8+2*k,2)}, 1.0 op_sel_hi:[1,0]")
                for k in range(8): out.append(f"v_rcp_f32 v{acc+8+k}, v{acc+8+k}")
                for k in range(4): out.append(f"v_pk_mul_f32 {V(acc+2*k,2)}, {V(acc+2*k,2)}, {V(acc+8+2*k,2)}")
                for k in range(4): out.append(f"v_cvt_pk_bf16_f32 v{acc+8+k}, v{acc+2*k}, v{acc+2*k+1}")
                out.append(f"buffer_store_dwordx4 {V(acc+8,4)}, v2, {sWS}, {so} offen sc1")
            else:
                P = acc + 28
                for k in range(4): out.append(f"v_cvt_pk_bf16_f32 v{P+k}, v{acc+2*k}, v{acc+2*k+1}")
                out.append(("fin", P, so, acc, rd))
            return out
        def run(item):
            if isinstance(item, str): I(item, tag="st")
            elif item[0] == "wl": self.wait_lg(item[1])
            else:
                _, P, so, acc, rd = item
                lo, le = self.new("Lg"), self.new("Lg")
                I(f"s_cmp_eq_u32 {sLAY}, 0\ns_cbranch_scc0 {lo}")
                I(f"buffer_store_dwordx4 {V(P,4)}, v12, {sWS}, {so} offen sc1", tag="st")
                if rd == 0:
                    for k in range(4): I(f"v_pk_mul_f32 {V(24+2*k,2)}, {V(16+2*k,2)}, {V(16+2*k,2)}")
                else:
                    for k in range(4): I(f"v_pk_fma_f32 {V(24+2*k,2)}, {V(48+2*k,2)}, {V(48+2*k,2)}, {V(24+2*k,2)}\nv_pk_add_f32 {V(16+2*k,2)}, {V(16+2*k,2)}, {V(48+2*k,2)}")
                    self.red8(16, 24, 32)
                    I(f"v_and_b32 v4, 3, v1\nv_cmp_eq_u32 {sP0}, 1, v4\nv_cmp_eq_u32 {sP1}, 2, v4\nv_cmp_eq_u32 vcc, 3, v4")
                    self.quadsum(32); self.quadsum(34)
                    I(f"v_lshlrev_b32 v4, 2, v1\nv_cndmask_b32 v32, v32, v34, {sP0}\nv_cndmask_b32 v32, v32, 1.0, {sP1}\nv_cndmask_b32 v32, v32, 0, vcc")
                    sv = self.vm; self.vm = None
                    I(f"buffer_atomic_add_f32 v32, v4, {sWS}, {T[7]} offen")
                    self.vm = sv
                I(f"s_branch {le}")
                self.L(lo)
                sv = self.vm; self.vm = None
                I(f"ds_write_b128 v14, {V(P,4)}\ns_waitcnt lgkmcnt(0)\nds_read_b64_tr_b16 {V(P,2)}, v13\nds_read_b64_tr_b16 {V(P+2,2)}, v13 offset:128\ns_waitcnt lgkmcnt(0)")
                I(f"buffer_store_dwordx4 {V(P,4)}, v12, {sOUT}, {so} offen")
                self.vm = sv
                self.L(le)

        side = []
        wtmp = {}
        def wreg(rd, ks, t):
            if which == 1: return A(8*ks + 4*t, 4)
            if ks < 16: return V(128 + 8*ks + 4*t, 4)
            return V(ACC[1-rd] + 16 + 8*(ks & 1) + 4*t, 4)
        def wfetch(rd, ks):
            b = ACC[1-rd] + 16 + 8*(ks & 1)
            for t in range(2):
                for q in range(2): I(f"ds_read_b64_tr_b16 {V(b+4*t+2*q,2)}, v{6+t} offset:{(ks-16)*2048+512*q}", tag=("w", rd, ks))
        for G in range(2*ng):
            rd, g = divmod(G, ng)
            acc = ACC[rd]
            self.wait_vm(("a", G))
            if self.sent:
                chk, stub = self.new("Lq"), self.new("Ls")
                self.L(chk)
                b = RING + 16*(G % 3)
                I(f"v_max3_u32 v13, v{b}, v{b+4}, v{b+8}" if which == 1 else f"v_max3_u32 v5, v{b}, v{b+4}, v{b+8}")
                tmp = 13 if which == 1 else 5
                I(f"v_max_u32 v{tmp}, v{tmp}, v{b+12}\nv_cmp_eq_u32 vcc, -1, v{tmp}\ns_cbranch_vccnz {stub}")
                self.L(chk + "_ok")
                self.stubs.append((stub, chk, [(RING+16*(x%3), SO[x%3]) for x in range(G, min(G+3, 2*ng))]))
            if rd == 1 and g == 1:
                I("s_waitcnt lgkmcnt(0)\ns_barrier"); xread(ACC[0]); side = epi(ACC[0], 0)
            if rd == 1 and g == 3:
                while side: run(side.pop(0))
                I("s_barrier")
            for k in range(4):
                ks = 4*g + k
                if which == 2 and ks == 15: wfetch(rd, 16)
                if which == 2 and ks >= 16:
                    self.wait_lg(("w", rd, ks))
                for t in range(2):
                    c = V(acc+16*t, 16) if (ks > 0 or t == 0) else "0"
                    I(f"v_mfma_f32_32x32x16_bf16 {V(acc+16*t,16)}, {wreg(rd, ks, t)}, {V(RING+16*(G%3)+4*k,4)}, {c}")
                    if rd == 1 and g in (1, 2) and (g, k) != (1, 0):
                        for _ in range(5):
                            if side and not (isinstance(side[0], tuple) and side[0][0] == "fin"): run(side.pop(0))
                if which == 2 and 16 <= ks < 27: wfetch(rd, ks + 1)
                if rd == 1 and g == 0 and k == 1: xwrite(ACC[0])
            if G + 3 < 2*ng: issue(G + 3)
        self.stamp(8 if which == 1 else 11)
        xwrite(ACC[1])
        I("s_waitcnt lgkmcnt(0)\ns_barrier")
        xread(ACC[1])
        for it in epi(ACC[1], 1): run(it)
        self.vm_reset()

    def gbar_in_gemm(self): pass

    def emit_stubs(self):
        for stub, chk, groups in self.stubs:
            self.L(stub)
            self.I(f"s_add_u32 {sSPIN}, {sSPIN}, 1\ns_cmp_gt_u32 {sSPIN}, {SPINMAX}\ns_cbranch_scc1 {chk}_ok\ns_sleep 1")
            for b, so in groups:
                for k in range(4): self.I(f"buffer_load_dwordx4 {V(b+4*k,4)}, v2, {sWS}, {so} offen offset:{1024*k} sc1")
            self.I(f"s_waitcnt vmcnt(0)\ns_branch {chk}")

    def build(self):
        I = self.I
        self.setup()
        self.stamp(0, False)
        self.first_loads()
        self.kidx()
        self.phase0()
        self.stamp(1, False)
        l = self.new("Lm")
        I(f"s_cmp_ge_u32 {sIDX}, 28\ns_cbranch_scc1 {l}")
        self.kgen()
        self.L(l)
        self.stamp(2, False)
        I("s_barrier")
        self.weights_upfront()
        self.stamp(3, False)
        self.L("L_layer")
        self.stamp(0)
        l = self.new("Lm")
        I(f"s_cmp_ge_u32 {sIDX}, 28\ns_cbranch_scc1 {l}")
        self.conv()
        self.L(l)
        self.stamp(4)
        if not self.sent: self.gbar()
        self.norm()
        self.stamp(6)
        if not self.sent: self.gbar()
        l = self.new("Lm")
        I(f"s_cmp_eq_u32 {sG1}, 0\ns_cbranch_scc1 {l}")
        self.gemm(1)
        self.L(l)
        self.stamp(9)
        if not self.sent: self.gbar()
        l = self.new("Lm")
        I(f"s_cmp_ge_u32 {sIDX}, 28\ns_cbranch_scc1 {l}")
        self.gemm(2)
        self.L(l)
        self.stamp(12)
        I(f"s_cmp_lg_u32 {sLAY}, 0\ns_cbranch_scc1 L_fin")
        if not self.sent: self.gbar()
        I(f"s_mov_b32 {sLAY}, 1\ns_mov_b32 {sLOFF}, {LSTRIDE}\ns_mov_b32 {sXB}, {WS_XB1}\ns_mov_b32 {sREC}, {WS_REC1}\ns_mov_b32 {sNEED}, 1\ns_mov_b32 {sEXP}, {fl(7.0)}\ns_mov_b32 {sSTB}, 24")
        l = self.new("Lm")
        I(f"s_or_b32 {T[0]}, s2, {sWV}\ns_cmp_lg_u32 {T[0]}, 0\ns_cbranch_scc1 {l}")
        I(f"v_mov_b32 v4, {sNON}\ns_mov_b64 exec, 1\nbuffer_store_dword v4, off, {sWS}, 0 sc1\ns_mov_b64 exec, -1")
        self.L(l)
        I("s_branch L_layer")
        self.L("L_fin")
        if self.stamps:
            I(f"s_lshl_b32 {T[0]}, s2, 10\ns_add_u32 {T[0]}, {T[0]}, {WS_STAMP}\nv_lshlrev_b32 v4, 2, v0\nbuffer_store_dword v3, v4, {sWS}, {T[0]} offen")
            I(f"s_or_b32 {T[0]}, s2, {sWV}\ns_cmp_lg_u32 {T[0]}, 0\ns_cbranch_scc1 L_end\nv_readlane_b32 {T[1]}, v3, 0")
            for k, ln in enumerate((1, 2, 3, 9, 12, 13, 14, 17, 20, 25, 28, 29, 30, 33, 36)):
                I(f"v_readlane_b32 {T[2]}, v3, {ln}\ns_sub_u32 {T[2]}, {T[2]}, {T[1]}\nv_writelane_b32 v5, {T[2]}, {k}")
            I("s_mov_b64 exec, 0x7fff\nglobal_store_dword v4, v5, s[46:47]")
        self.L("L_end")
        I("s_endpgm")
        self.emit_stubs()
        body, nn = self.text()
        head = open("cdna_kernels/" + KNAME[:-7] + ".s.ref").read().split("; Override launch")[0]
        return (head + "; @launch grid=(256,1,1) block=(256,1,1) lds=163840\n"
                + f'.amdgcn_target "amdgcn-amd-amdhsa--gfx950"\n.text\n.globl {KNAME}\n.p2align 8\n.type {KNAME},@function\n{KNAME}:\n'
                + body + f'''.section .rodata,"a"
.p2align 6
.amdhsa_kernel {KNAME}
  .amdhsa_next_free_vgpr 512
  .amdhsa_next_free_sgpr 102
  .amdhsa_accum_offset 256
  .amdhsa_group_segment_fixed_size 0
  .amdhsa_kernarg_size 136
  .amdhsa_user_sgpr_count 2
  .amdhsa_user_sgpr_kernarg_segment_ptr 1
  .amdhsa_system_sgpr_workgroup_id_x 1
  .amdhsa_float_denorm_mode_32 3
.end_amdhsa_kernel
'''), nn

if __name__ == "__main__":
    out = sys.argv[1]
    g = Gen(sent="sent" in sys.argv, stamps="stamp" in sys.argv)
    s, nn = g.build()
    open(out, "w").write(s)
    print("instructions", sum(1 for x in g.ins if x.op), "nops added", nn)
```
